```python
import torch

def _softmax(x, axis=-1):
    return torch.softmax(x, dim=axis)
def _gelu(x):
    return torch.nn.functional.gelu(x, approximate="tanh")
def _silu(x):
    return torch.nn.functional.silu(x)
def _sigmoid(x):
    return torch.sigmoid(x)
def _layernorm(x, axis=-1, eps=1e-5):
    m = x.mean(dim=axis, keepdim=True)
    v = x.var(dim=axis, keepdim=True, unbiased=False)
    return (x - m) / torch.sqrt(v + eps)
def _scatter_add(tgt, idx, src, axis=0):
    return tgt.clone().index_add_(axis, idx, src)
def _segment_sum(src, seg, n):
    out = torch.zeros((n,) + src.shape[1:], dtype=src.dtype)
    return out.index_add_(0, seg, src)
def _pad(x, pw):
    flat = tuple(v for pair in reversed(pw) for v in pair)
    return torch.nn.functional.pad(x, flat)

kernel_name = 'sequential_preLN__mha_block__glu_gated_glu__prompt'

def setup_inputs():

    _w = (lambda a: (lambda t: t.to(torch.bfloat16) if t.is_floating_point() else t)(torch.as_tensor(a)))
    def _A_setup():
        B, S, D, H = 1, 2048, 512, 32
        return {
            "x": _w((lambda *s: torch.randn(*s, dtype=torch.bfloat16) * 0.05)(B, S, D)),
            "wqkv": _w((lambda *s: torch.randn(*s, dtype=torch.bfloat16) * 0.05)(D, 3 * D)),
            "wo": _w((lambda *s: torch.randn(*s, dtype=torch.bfloat16) * 0.05)(D, D)),
        }
    _A_in = _A_setup()

    def _B_setup():
        B, S, D, F = 1, 2048, 512, 1376
        return {
            "x": _w((lambda *s: torch.randn(*s, dtype=torch.bfloat16) * 0.05)(B, S, D)),
            "w_gate": _w((lambda *s: torch.randn(*s, dtype=torch.bfloat16) * 0.05)(D, F)),
            "w_up": _w((lambda *s: torch.randn(*s, dtype=torch.bfloat16) * 0.05)(D, F)),
            "w_down": _w((lambda *s: torch.randn(*s, dtype=torch.bfloat16) * 0.05)(F, D)),
        }
    _B_in = _B_setup()

    return {
        "A_x": _A_in["x"],
        "A_wqkv": _A_in["wqkv"],
        "A_wo": _A_in["wo"],
        "B_x": _B_in["x"],
        "B_w_gate": _B_in["w_gate"],
        "B_w_up": _B_in["w_up"],
        "B_w_down": _B_in["w_down"],
    }

def reference(A_x, A_wqkv, A_wo, B_x, B_w_gate, B_w_up, B_w_down):
    def _A_ref(x, wqkv, wo):
        B, S, D = x.shape
        H = 32
        Dh = D // H
        qkv = (lambda x, *d: x.permute(*d))((x @ wqkv).reshape(B, S, 3, H, Dh), 2, 0, 3, 1, 4)
        q, k, v = qkv[0], qkv[1], qkv[2]
        scores = torch.einsum("bhqd,bhkd->bhqk", q, k) * (Dh ** -0.5)
        p = _softmax(scores, axis=-1)
        o = torch.einsum("bhqk,bhkd->bhqd", p, v)
        return (lambda x, *d: x.permute(*d))(o, 0, 2, 1, 3).reshape(B, S, D) @ wo

    def _B_ref(x, w_gate, w_up, w_down):
        g = torch.einsum("bsd,df->bsf", x, w_gate)
        u = torch.einsum("bsd,df->bsf", x, w_up)
        h = _sigmoid(g) * u
        return torch.einsum("bsf,fd->bsd", h, w_down)

    x = A_x
    h = x + _A_ref(_layernorm(x, axis=-1), A_wqkv, A_wo)
    h2 = h + _B_ref(_layernorm(h, axis=-1), B_w_gate, B_w_up, B_w_down)
    return h2
```

```python
class Asm:
    def __init__(self):
        self.lines = []
    def __call__(self, s, *a):
        for ln in s.strip("\n").split("\n"):
            self.lines.append("    " + ln.strip() if not ln.strip().endswith(":") else ln.strip())
    def label(self, n):
        self.lines.append(f"{n}:")
    def raw(self, s):
        self.lines.append(s)
    def comment(self, s):
        self.lines.append(f"    ; {s}")
    def text(self):
        return "\n".join(self.lines) + "\n"

def v(i, n=1):
    return f"v{i}" if n == 1 else f"v[{i}:{i+n-1}]"
def a(i, n=1):
    return f"a{i}" if n == 1 else f"a[{i}:{i+n-1}]"
def s(i, n=1):
    return f"s{i}" if n == 1 else f"s[{i}:{i+n-1}]"

def srd(A, d, ptr, nbytes, add=0):
    if add:
        A(f"s_add_u32 s{d}, s{ptr}, {add:#x}")
        A(f"s_addc_u32 s{d+1}, s{ptr+1}, 0")
    else:
        A(f"s_mov_b32 s{d}, s{ptr}")
        A(f"s_mov_b32 s{d+1}, s{ptr+1}")
    A(f"s_mov_b32 s{d+2}, {nbytes:#x}")
    A(f"s_mov_b32 s{d+3}, 0x20000")

def kernel_begin(A, name):
    A.raw(f".globl {name}")
    A.raw(".p2align 8")
    A.raw(f".type {name},@function")
    A.label(name)

def descriptor(name, vgpr, agpr=0, sgpr=96):
    acc = (vgpr + 3) // 4 * 4
    nfv = acc + agpr if agpr else vgpr
    return f""".p2align 6
.amdhsa_kernel {name}
  .amdhsa_next_free_vgpr {nfv}
  .amdhsa_next_free_sgpr {sgpr}
  .amdhsa_accum_offset {acc}
  .amdhsa_group_segment_fixed_size 0
  .amdhsa_kernarg_size 80
  .amdhsa_user_sgpr_count 2
  .amdhsa_user_sgpr_kernarg_segment_ptr 1
  .amdhsa_system_sgpr_workgroup_id_x 1
  .amdhsa_float_denorm_mode_32 3
  .amdhsa_float_denorm_mode_16_64 3
.end_amdhsa_kernel
"""
```

```python
from asmlib import *
from layout import *

NAME = "qkv_kernel"
LDS = 98304 + 1024 + 8192
CS = 98304
GR = CS + 1024

def gen(A, PRE=4):
    kernel_begin(A, NAME)
    vL, vT, vQ = 1, 2, 3
    vXo = [4, 5]
    vWo = 6
    vB = [7, 8, 9, 10]
    vTmp, vTmp2 = 11, 12
    ONES = 16
    ACC = 20
    SX = 68
    GRM = 76
    CSA = 84
    WB = 108
    NV = 156
    A("s_cmp_ge_u32 s2, 256")
    A(f"s_cbranch_scc1 {NAME}_end")
    A("s_load_dwordx4 s[4:7], s[0:1], 0")
    A("s_load_dwordx2 s[8:9], s[0:1], 72")
    A(f"v_and_b32 v{vL}, 63, v0")
    A(f"v_lshrrev_b32 v{vTmp}, 6, v0")
    A(f"v_and_b32 v{vT}, 15, v0")
    A(f"v_readfirstlane_b32 s24, v{vTmp}")
    A(f"v_lshrrev_b32 v{vQ}, 4, v{vL}")
    A("s_and_b32 s3, s2, 7")
    A("s_lshr_b32 s10, s2, 3")
    A("s_lshr_b32 s25, s3, 1")
    A("s_lshl_b32 s25, s25, 2")
    A("s_and_b32 s11, s10, 3")
    A("s_add_u32 s25, s25, s11")
    A("s_and_b32 s26, s3, 1")
    A("s_lshl_b32 s26, s26, 3")
    A("s_lshr_b32 s27, s10, 2")
    A("s_add_u32 s26, s26, s27")
    A("s_lshl_b32 s11, s11, 1")
    A("s_add_u32 s27, s27, s11")
    A("s_lshl_b32 s28, s25, 2")
    A("s_add_u32 s33, s28, s24")
    A("s_lshl_b32 s28, s33, 15")
    A("s_mul_i32 s29, s26, 192")
    A(f"s_mul_i32 s11, s24, {16*3072}")
    A("s_add_u32 s29, s29, s11")
    A("s_lshl_b32 s32, s24, 10")
    A(f"v_lshlrev_b32 v{vXo[0]}, 10, v{vT}")
    A(f"v_lshl_add_u32 v{vXo[0]}, v{vQ}, 4, v{vXo[0]}")
    A(f"v_add_u32 v{vXo[1]}, 0x4000, v{vXo[0]}")
    A(f"v_lshrrev_b32 v{vTmp}, 2, v{vL}")
    A(f"v_mul_u32_u24 v{vWo}, 3072, v{vTmp}")
    A(f"v_lshrrev_b32 v{vTmp}, 4, v{vL}")
    A(f"v_and_b32 v{vTmp}, 2, v{vTmp}")
    A(f"v_and_b32 v{vTmp2}, 3, v{vL}")
    A(f"v_xor_b32 v{vTmp}, v{vTmp}, v{vTmp2}")
    A(f"v_lshl_add_u32 v{vWo}, v{vTmp}, 4, v{vWo}")
    A("s_waitcnt lgkmcnt(0)")
    srd(A, 12, 4, 2048 * 1024)
    srd(A, 16, 6, 512 * 3072)
    srd(A, 20, 8, WS_SIZE)

    issued = [0]
    def issue(i):
        A(f"s_add_u32 s30, s27, {i}")
        A("s_and_b32 s30, s30, 7")
        A("s_lshl_b32 s31, s30, 7")
        A("s_add_u32 s31, s31, s28")
        A(f"s_mul_i32 s30, s30, {64*3072}")
        A("s_add_u32 s30, s30, s29")
        for sb in range(3):
            A(f"s_add_u32 m0, s32, {i*12288 + sb*4096 - sb*64}")
            if sb == 0:
                A(f"buffer_load_dwordx4 {a(((i*2+0)*2+0)*4,4)}, v{vXo[0]}, s[12:15], s31 offen")
            elif sb == 1:
                A(f"buffer_load_dwordx4 {a(((i*2+1)*2+0)*4,4)}, v{vXo[0]}, s[12:15], s31 offen offset:64")
            else:
                A(f"buffer_load_dwordx4 {a(((i*2+0)*2+1)*4,4)}, v{vXo[1]}, s[12:15], s31 offen")
            A(f"buffer_load_dwordx4 v{vWo}, s[16:19], s30 offen offset:{sb*64} lds")
        A(f"buffer_load_dwordx4 {a(((i*2+1)*2+1)*4,4)}, v{vXo[1]}, s[12:15], s31 offen offset:64")
        issued[0] += 7
    for i in range(PRE):
        issue(i)
    A(f"v_lshrrev_b32 v{vTmp}, 2, v{vL}")
    A(f"v_and_b32 v{vTmp}, 3, v{vTmp}")
    A(f"v_lshl_add_u32 v{vTmp}, v{vQ}, 3, v{vTmp}")
    A(f"v_lshlrev_b32 v{vB[0]}, 6, v{vTmp}")
    A(f"v_and_b32 v{vTmp}, 3, v{vL}")
    A(f"v_lshl_add_u32 v{vB[0]}, v{vTmp}, 3, v{vB[0]}")
    A(f"v_and_b32 v{vTmp}, 1, v{vQ}")
    A(f"v_lshl_add_u32 v{vB[0]}, v{vTmp}, 5, v{vB[0]}")
    A(f"v_xor_b32 v{vB[1]}, 32, v{vB[0]}")
    A(f"v_add_u32 v{vB[2]}, {4*12288}, v{vB[0]}")
    A(f"v_add_u32 v{vB[3]}, {4*12288}, v{vB[1]}")
    for r in range(4):
        A(f"v_mov_b32 v{ONES+r}, 0x3f803f80")
    for r in range(24):
        A(f"v_mov_b32 v{CSA+r}, 0")
    A(f"v_lshlrev_b32 v{vTmp}, 2, v0")
    A(f"ds_write_b32 v{vTmp}, v{CSA} offset:{CS}") if CS < 65536 else None
    if CS >= 65536:
        A(f"v_add_u32 v{vTmp}, {CS}, v{vTmp}")
        A(f"ds_write_b32 v{vTmp}, v{CSA}")

    def wait_chunk(i):
        A(f"s_waitcnt vmcnt({issued[0] - 7*(i+1)}) lgkmcnt(0)" if i == 0 else f"s_waitcnt vmcnt({issued[0] - 7*(i+1)})")
        A("s_barrier")
    def reads(i, sp, buf):
        for ct in range(6):
            sb, h = ct >> 1, ct & 1
            base = vB[h + (2 if i >= 4 else 0)]
            off = (i & 3) * 12288 + sb * 4096 + sp * 2048
            d = WB + (buf * 6 + ct) * 4
            A(f"ds_read_b64_tr_b16 {v(d,2)}, v{base} offset:{off}")
            A(f"ds_read_b64_tr_b16 {v(d+2,2)}, v{base} offset:{off+256}")
    def mfmas(i, sp, buf, mid=None):
        first = (i == 0 and sp == 0)
        xf = [a(((i*2+sp)*2+tt)*4, 4) for tt in range(2)]
        for tt in range(2):
            c = "0" if first else v(SX+4*tt, 4)
            A(f"v_mfma_f32_16x16x32_bf16 {v(SX+4*tt,4)}, {v(ONES,4)}, {xf[tt]}, {c}")
            c = "0" if first else v(GRM+4*tt, 4)
            A(f"v_mfma_f32_16x16x32_bf16 {v(GRM+4*tt,4)}, {xf[tt]}, {xf[tt]}, {c}")
        if mid: mid()
        for ct in range(6):
            w = v(WB + (buf*6+ct)*4, 4)
            for tt in range(2):
                acc = v(ACC + (tt*6+ct)*4, 4)
                c = "0" if first else acc
                A(f"v_mfma_f32_16x16x32_bf16 {acc}, {w}, {xf[tt]}, {c}")
        lab = f"{NAME}_cs{i}_{sp}"
        A(f"s_cmp_lg_u32 s24, {i>>1}")
        A(f"s_cbranch_scc1 {lab}")
        for ct in range(6):
            w = v(WB + (buf*6+ct)*4, 4)
            A(f"v_mfma_f32_16x16x32_bf16 {v(CSA+4*ct,4)}, {v(ONES,4)}, {w}, {v(CSA+4*ct,4)}")
        A.label(lab)

    wait_chunk(0)
    reads(0, 0, 0)
    for i in range(8):
        reads(i, 1, 1)
        mfmas(i, 0, 0, mid=lambda: A("s_waitcnt lgkmcnt(12)"))
        if i + PRE < 8:
            issue(i + PRE)
        if i < 7:
            wait_chunk(i + 1)
            reads(i + 1, 0, 0)
            mfmas(i, 1, 1, mid=lambda: A("s_waitcnt lgkmcnt(12)"))
        else:
            mfmas(i, 1, 1, mid=lambda: A("s_waitcnt lgkmcnt(0)"))

    E = WB
    vA1, vA2, vA3 = E, E+1, E+2
    A(f"v_lshlrev_b32 v{vA1}, 2, v{vT}")
    A(f"v_add_u32 v{vA1}, {CS}, v{vA1}")
    A(f"v_lshlrev_b32 v{vA2}, 6, v{vT}")
    A(f"v_lshl_add_u32 v{vA2}, v{vQ}, 4, v{vA2}")
    A("s_lshl_b32 s30, s24, 11")
    A(f"s_add_u32 s30, s30, {GR}")
    A(f"v_add_u32 v{vA2}, s30, v{vA2}")
    A(f"v_mul_u32_u24 v{vA3}, 68, v{vT}")
    A(f"v_add_u32 v{vA3}, s30, v{vA3}")
    A("s_nop 7")
    A(f"ds_write_b128 v{vA2}, {v(GRM,4)}")
    A(f"ds_write_b128 v{vA2}, {v(GRM+4,4)} offset:1024")
    A("s_mov_b64 exec, 0xffff")
    for ct in range(6):
        A(f"ds_add_f32 v{vA1}, v{CSA+4*ct} offset:{ct*64}")
    A("s_mov_b64 exec, -1")
    vS2 = [E+4, E+5]
    A(f"ds_read_b32 v{vS2[0]}, v{vA3}")
    A(f"ds_read_b32 v{vS2[1]}, v{vA3} offset:1024")
    A(f"v_lshlrev_b32 v{vA1}, 4, v{vQ}")
    A(f"v_add_u32 v{vA1}, {CS}, v{vA1}")
    A("s_waitcnt lgkmcnt(0)")
    A("s_barrier")
    for ct in range(6):
        A(f"ds_read_b128 {v(CSA+4*ct,4)}, v{vA1} offset:{ct*64}")
    vMean = [E+6, E+7]; vRs = [E+8, E+9]; t0 = E+10
    A(f"s_mov_b32 s30, {f32bits(1.0/512):#x}")
    A(f"s_mov_b32 s31, {f32bits(1e-5):#x}")
    for tt in range(2):
        m, r = vMean[tt], vRs[tt]
        A(f"v_mul_f32 v{m}, s30, v{SX+4*tt}")
        A(f"v_mul_f32 v{r}, s30, v{vS2[tt]}")
        A(f"v_fma_f32 v{r}, -v{m}, v{m}, v{r}")
        A(f"v_max_f32 v{r}, 0, v{r}")
        A(f"v_cvt_pk_bf16_f32 v{t0}, v{m}, v{r}")
        A(f"v_lshlrev_b32 v{m}, 16, v{t0}")
        A(f"v_and_b32 v{r}, 0xffff0000, v{t0}")
        A(f"v_add_f32 v{r}, s31, v{r}")
        A(f"v_cvt_pk_bf16_f32 v{t0}, v{r}, v{r}")
        A(f"v_and_b32 v{r}, 0xffff0000, v{t0}")
        A(f"v_sqrt_f32 v{r}, v{r}")
        A("s_nop 0")
        A(f"v_cvt_pk_bf16_f32 v{t0}, v{r}, v{r}")
        A(f"v_and_b32 v{r}, 0xffff0000, v{t0}")
        A(f"v_rcp_f32 v{r}, v{r}")
    vQK = [E+12, E+13]; vVV = [E+14, E+15]
    A(f"v_lshrrev_b32 v{t0}, 1, v{vQ}")
    A(f"v_lshl_add_u32 v{t0}, v{t0}, 5, v{vT}")
    A(f"v_lshlrev_b32 v{vQK[0]}, 4, v{t0}")
    A(f"v_and_b32 v{t0}, 1, v{vQ}")
    A(f"v_lshl_add_u32 v{vQK[0]}, v{t0}, 3, v{vQK[0]}")
    A(f"v_add_u32 v{vQK[1]}, 256, v{vQK[0]}")
    A(f"v_lshlrev_b32 v{vVV[0]}, 5, v{vT}")
    A(f"v_lshl_add_u32 v{vVV[0]}, v{vQ}, 3, v{vVV[0]}")
    A(f"v_add_u32 v{vVV[1]}, 512, v{vVV[0]}")
    A("s_mul_i32 s34, s26, 6")
    A("s_lshl_b32 s35, s33, 10")
    A(f"s_mov_b32 s36, {f32bits(QSCALE):#x}")
    A("s_waitcnt lgkmcnt(0)")
    wk = E + 16
    for ct in range(6):
        A(f"s_add_u32 s37, s34, {ct}")
        A("s_lshl_b32 s38, s37, 16")
        A("s_add_u32 s38, s38, s35")
        A("s_cmp_lt_u32 s37, 32")
        A("s_cselect_b32 s39, s36, 1.0")
        A("s_cmp_ge_u32 s37, 64")
        A("s_cselect_b64 s[40:41], -1, 0")
        for tt in range(2):
            b = wk + ((ct*2+tt) & 3) * 8
            acc = ACC + (tt*6+ct)*4
            A(f"v_mul_f32 v{b+6}, s39, v{vRs[tt]}")
            A(f"v_cndmask_b32 v{b+7}, v{vQK[tt]}, v{vVV[tt]}, s[40:41]")
            for r in range(4):
                A(f"v_fma_f32 v{b+r}, -v{vMean[tt]}, v{CSA+4*ct+r}, v{acc+r}")
            for r in range(4):
                A(f"v_mul_f32 v{b+r}, v{b+r}, v{b+6}")
            A(f"v_cvt_pk_bf16_f32 v{b+4}, v{b}, v{b+1}")
            A(f"v_cvt_pk_bf16_f32 v{b+5}, v{b+2}, v{b+3}")
            A(f"buffer_store_dwordx2 {v(b+4,2)}, v{b+7}, s[20:23], s38 offen")
    A.label(f"{NAME}_end")
    A("s_endpgm")
    return dict(name=NAME, vgpr=NV, agpr=128, grid=256, block=256, lds=LDS)
```

```python
from asmlib import *
from layout import *

NAME = "attn_kernel"
ONESB = 131072
LDS = 131072 + 8192
UNR = 4

def gen(A):
    kernel_begin(A, NAME)
    vL = 1
    vK, vV, vInc, vTmp, vTmp2, vLo = 2, 3, 4, 5, 6, 7
    QF = 8
    KF = 12
    VF = 16
    P = 32
    S = 40
    O = 72
    CB = 88
    NV = 104
    A("s_cmp_ge_u32 s2, 256")
    A(f"s_cbranch_scc1 {NAME}_end")
    A("s_load_dwordx2 s[8:9], s[0:1], 72")
    A(f"v_and_b32 v{vL}, 63, v0")
    A(f"v_lshrrev_b32 v{vTmp}, 6, v0")
    A(f"v_lshlrev_b32 v{vLo}, 4, v{vL}")
    A(f"v_readfirstlane_b32 s24, v{vTmp}")
    A("s_and_b32 s3, s2, 7")
    A("s_lshl_b32 s3, s3, 2")
    A("s_lshr_b32 s10, s2, 3")
    A("s_and_b32 s10, s10, 3")
    A("s_add_u32 s25, s3, s10")
    A("s_lshr_b32 s26, s2, 5")
    A("s_lshl_b32 s27, s25, 16")
    A("s_lshl_b32 s28, s26, 3")
    A("s_add_u32 s28, s28, s24")
    A("s_lshl_b32 s28, s28, 10")
    A("s_add_u32 s28, s28, s27")
    A("s_lshl_b32 s32, s24, 10")
    A("s_add_u32 s29, s27, s32")
    A("s_waitcnt lgkmcnt(0)")
    srd(A, 20, 8, WS_SIZE)
    A(f"buffer_load_dwordx4 {v(QF,4)}, v{vLo}, s[20:23], s28 offen")
    for c in range(8):
        A(f"s_add_u32 m0, s32, {c*8192}")
        A(f"s_add_u32 s30, s29, {WS_K + c*8192}")
        A(f"buffer_load_dwordx4 v{vLo}, s[20:23], s30 offen lds")
        A(f"s_add_u32 m0, s32, {65536 + c*8192}")
        A(f"s_add_u32 s30, s29, {WS_V + c*8192}")
        A(f"buffer_load_dwordx4 v{vLo}, s[20:23], s30 offen lds")
    for r in range(4):
        A(f"v_mov_b32 v{P+r}, 0x3f803f80")
    A(f"v_lshlrev_b32 v{vTmp}, 4, v0")
    A(f"v_add_u32 v{vTmp}, {ONESB}, v{vTmp}")
    A(f"ds_write_b128 v{vTmp}, {v(P,4)}")
    for r in range(16):
        A(f"v_mov_b32 v{CB+r}, 0")
    A("s_mov_b32 s41, 0")
    A("s_waitcnt vmcnt(12) lgkmcnt(0)")
    A("s_barrier")

    def setup_addr():
        A(f"v_mov_b32 v{vK}, v{vLo}")
        A(f"v_and_b32 v{vTmp}, 15, v{vL}")
        A(f"v_lshlrev_b32 v{vV}, 3, v{vTmp}")
        A(f"v_lshrrev_b32 v{vTmp}, 5, v{vL}")
        A(f"v_lshrrev_b32 v{vTmp2}, 4, v{vL}")
        A(f"v_and_b32 v{vTmp2}, 1, v{vTmp2}")
        A(f"v_xor_b32 v{vTmp}, v{vTmp}, v{vTmp2}")
        A(f"v_lshl_add_u32 v{vV}, v{vTmp}, 7, v{vV}")
        A(f"v_lshl_add_u32 v{vV}, v{vTmp2}, 16, v{vV}")
        A(f"v_add_u32 v{vV}, 0x10000, v{vV}")
        A(f"v_xor_b32 v{vTmp2}, 1, v{vTmp2}")
        A(f"v_mul_u32_u24 v{vInc}, {UNR*1024}, v{vTmp2}")
    def rdK(t):
        A(f"ds_read_b128 {v(KF,4)}, v{vK} offset:{t*1024}")
    def rdV(t, buf):
        for u in range(2):
            for rd in range(2):
                A(f"ds_read_b64_tr_b16 {v(VF+buf*8+u*4+rd*2,2)}, v{vV} offset:{t*1024+u*512+rd*256}")
    def mS(buf):
        A(f"v_mfma_f32_32x32x16_bf16 {v(S+16*buf,16)}, {v(KF,4)}, {v(QF,4)}, {v(CB,16)}")

    A.label(f"{NAME}_pass")
    setup_addr()
    for r in range(16):
        A(f"v_mov_b32 v{O+r}, 0")
    rdK(0)
    rdV(0, 0)
    A("s_waitcnt lgkmcnt(4)")
    mS(0)
    rdK(1)
    A("s_mov_b32 s40, 0")
    A("s_nop 3")
    A.raw(".p2align 6")
    A.label(f"{NAME}_loop")
    for t in range(UNR):
        b = t & 1
        Sb = S + 16*b
        A("s_waitcnt lgkmcnt(0)")
        mS(b ^ 1)
        rdK(t + 2)
        rdV(t + 1, b ^ 1)
        for r in range(8):
            A(f"v_exp_f32 v{Sb+r}, v{Sb+r}")
        for r in range(4):
            A(f"v_cvt_pk_bf16_f32 v{P+r}, v{Sb+2*r}, v{Sb+2*r+1}")
        A(f"v_exp_f32 v{Sb+8}, v{Sb+8}")
        A(f"v_exp_f32 v{Sb+9}, v{Sb+9}")
        A(f"v_mfma_f32_32x32x16_bf16 {v(O,16)}, {v(VF+b*8,4)}, {v(P,4)}, {v(O,16)}")
        for r in range(10, 16):
            A(f"v_exp_f32 v{Sb+r}, v{Sb+r}")
        for r in range(4):
            A(f"v_cvt_pk_bf16_f32 v{P+4+r}, v{Sb+8+2*r}, v{Sb+8+2*r+1}")
        if t == UNR - 1:
            A(f"v_add_u32 v{vK}, {UNR*1024}, v{vK}")
            A(f"v_add_u32 v{vV}, v{vInc}, v{vV}")
        else:
            A("s_nop 1")
        A(f"v_mfma_f32_32x32x16_bf16 {v(O,16)}, {v(VF+b*8+4,4)}, {v(P+4,4)}, {v(O,16)}")
    A("s_add_u32 s40, s40, 1")
    A(f"s_cmp_lg_u32 s40, {8//UNR}")
    A(f"s_cbranch_scc1 {NAME}_nosync")
    A("s_cmp_lg_u32 s41, 0")
    A(f"s_cbranch_scc1 {NAME}_nosync")
    A("s_waitcnt vmcnt(0)")
    A("s_barrier")
    A.label(f"{NAME}_nosync")
    A(f"s_cmp_lt_u32 s40, {64//UNR}")
    A(f"s_cbranch_scc1 {NAME}_loop")
    A("s_waitcnt lgkmcnt(0)")
    A("s_nop 15")
    A("s_cmp_lg_u32 s41, 0")
    A(f"s_cbranch_scc1 {NAME}_fin")
    A(f"v_max3_f32 v{vTmp}, |v{O}|, |v{O+1}|, |v{O+2}|")
    A(f"v_max3_f32 v{vTmp}, |v{O+3}|, |v{O+4}|, v{vTmp}")
    A(f"v_max3_f32 v{vTmp}, |v{O+5}|, |v{O+6}|, v{vTmp}")
    A(f"v_max_f32 v{vTmp}, |v{O+7}|, v{vTmp}")
    A(f"s_mov_b32 s42, {f32bits(2.0**-60):#x}")
    A(f"s_mov_b32 s43, {f32bits(2.0**60):#x}")
    A(f"s_mov_b32 s44, {f32bits(2.0**126):#x}")
    A(f"v_cmp_nge_f32 s[46:47], v{O+8}, s42")
    A(f"v_cmp_nle_f32 s[48:49], v{O+8}, s43")
    A(f"v_cmp_nle_f32 vcc, v{vTmp}, s44")
    A("s_or_b64 s[46:47], s[46:47], s[48:49]")
    A("s_or_b64 s[46:47], s[46:47], vcc")
    A("s_cmp_eq_u64 s[46:47], 0")
    A(f"s_cbranch_scc1 {NAME}_fin")
    A(f"v_mov_b32 v{vK}, v{vLo}")
    A(f"v_mov_b32 v{vTmp}, 0xff800000")
    A("s_mov_b32 s40, 0")
    A.label(f"{NAME}_maxloop")
    rdK(0)
    A("s_waitcnt lgkmcnt(0)")
    A(f"v_mfma_f32_32x32x16_bf16 {v(S,16)}, {v(KF,4)}, {v(QF,4)}, 0")
    A(f"v_add_u32 v{vK}, 1024, v{vK}")
    A("s_nop 15")
    for r in range(8):
        A(f"v_max3_f32 v{vTmp}, v{S+2*r}, v{S+2*r+1}, v{vTmp}")
    A("s_add_u32 s40, s40, 1")
    A("s_cmp_lt_u32 s40, 64")
    A(f"s_cbranch_scc1 {NAME}_maxloop")
    A(f"v_mov_b32 v{vTmp2}, v{vTmp}")
    A("s_nop 1")
    A(f"v_permlane32_swap_b32 v{vTmp}, v{vTmp2}")
    A("s_nop 1")
    A(f"v_max_f32 v{vTmp}, v{vTmp}, v{vTmp2}")
    for r in range(16):
        A(f"v_sub_f32 v{CB+r}, 0, v{vTmp}")
    A("s_mov_b32 s41, 1")
    A(f"s_branch {NAME}_pass")
    A.label(f"{NAME}_fin")
    A(f"v_rcp_f32 v{vTmp}, v{O+8}")
    A("s_nop 0")
    for r in range(8):
        A(f"v_mul_f32 v{O+r}, v{O+r}, v{vTmp}")
    for r in range(4):
        A(f"v_cvt_pk_bf16_f32 v{P+r}, v{O+2*r}, v{O+2*r+1}")
    A(f"s_add_u32 s28, s28, {WS_O}")
    A(f"buffer_store_dwordx4 {v(P,4)}, v{vLo}, s[20:23], s28 offen")
    A.label(f"{NAME}_end")
    A("s_endpgm")
    return dict(name=NAME, vgpr=NV, agpr=0, grid=256, block=512, lds=LDS)
```

```python
from asmlib import *
from layout import *

def gen(A, which):
    NAME = "oproj_kernel" if which == 3 else "down_kernel"
    KS = 32 if which == 3 else 86
    NCH = (KS + 7) // 8
    NS = 4 if which == 3 else 5
    LDS = NS * 32768
    kernel_begin(A, NAME)
    vL, vLo, vWo, vTmp, vTmp2, vOut = 1, 2, 3, 4, 5, 6
    vAB = [8, 9, 10]
    vWB = [11, 12, 13]
    RES = 16
    ACC = 24
    FR = 40
    NV = 104
    A("s_cmp_ge_u32 s2, 256")
    A(f"s_cbranch_scc1 {NAME}_end")
    if which == 3:
        A("s_load_dwordx2 s[4:5], s[0:1], 0")
        A("s_load_dwordx2 s[6:7], s[0:1], 16")
    else:
        A("s_load_dwordx4 s[4:7], s[0:1], 48")
    A("s_load_dwordx2 s[8:9], s[0:1], 72")
    A(f"v_and_b32 v{vL}, 63, v0")
    A(f"v_lshrrev_b32 v{vTmp}, 6, v0")
    A(f"v_lshlrev_b32 v{vLo}, 4, v{vL}")
    A(f"v_readfirstlane_b32 s24, v{vTmp}")
    A("s_and_b32 s3, s2, 7")
    A("s_lshr_b32 s10, s2, 3")
    A("s_and_b32 s11, s10, 3")
    A("s_lshl_b32 s25, s3, 2")
    A("s_add_u32 s25, s25, s11")
    A("s_lshr_b32 s26, s10, 2")
    A("s_and_b32 s34, s24, 1")
    A("s_lshr_b32 s35, s24, 1")
    A(f"v_lshrrev_b32 v{vTmp}, 3, v{vL}")
    A(f"v_lshlrev_b32 v{vWo}, 10, v{vTmp}")
    A(f"v_lshrrev_b32 v{vTmp}, 2, v{vL}")
    A(f"v_and_b32 v{vTmp}, 4, v{vTmp}")
    A(f"v_and_b32 v{vTmp2}, 7, v{vL}")
    A(f"v_xor_b32 v{vTmp}, v{vTmp}, v{vTmp2}")
    A(f"v_lshl_add_u32 v{vWo}, v{vTmp}, 4, v{vWo}")
    if which == 3:
        ks_stride, tile_stride, abase = 65536, 1024, WS_O
    else:
        ks_stride, tile_stride, abase = 1024, 86*1024, WS_HH
    A(f"s_mul_i32 s28, s25, {2*tile_stride}")
    A(f"s_mul_i32 s11, s24, {2*ks_stride}")
    A("s_add_u32 s28, s28, s11")
    A(f"s_add_u32 s28, s28, {abase}")
    A("s_lshl_b32 s29, s26, 7")
    A("s_lshl_b32 s11, s24, 15")
    A("s_add_u32 s29, s29, s11")
    A("s_lshl_b32 s32, s24, 12")
    A("s_lshl_b32 s33, s25, 1")
    A("s_add_u32 s33, s33, s34")
    A("s_waitcnt lgkmcnt(0)")
    if which == 3:
        srd(A, 12, 4, 2048*1024)
        srd(A, 16, 6, 512*1024)
    else:
        srd(A, 12, 6, 2048*1024)
        srd(A, 16, 4, 1376*1024)
    srd(A, 20, 8, WS_SIZE)
    issued = [0]
    marks = {}
    def issue(c):
        slot = (c % NS) * 32768
        for e in range(4):
            kq, tl = e >> 1, e & 1
            A(f"s_add_u32 m0, s32, {slot + kq*2048 + tl*1024}")
            A(f"s_add_u32 s30, s28, {(c*8+kq)*ks_stride + tl*tile_stride}")
            A(f"buffer_load_dwordx4 v{vLo}, s[20:23], s30 offen lds")
            A(f"s_add_u32 m0, s32, {slot + 16384 + e*1024}")
            A(f"s_add_u32 s30, s29, {(c*128 + e*8)*1024}")
            A(f"buffer_load_dwordx4 v{vWo}, s[16:19], s30 offen lds")
        issued[0] += 8
        marks[c] = issued[0]
    issue(0)
    A(f"v_and_b32 v{vTmp}, 31, v{vL}")
    A(f"v_lshlrev_b32 v{vOut}, 10, v{vTmp}")
    A(f"v_lshrrev_b32 v{vTmp}, 5, v{vL}")
    A("s_lshl_b32 s36, s33, 15")
    A("s_lshl_b32 s37, s26, 7")
    A("s_add_u32 s36, s36, s37")
    A("s_lshl_b32 s37, s35, 6")
    A("s_add_u32 s36, s36, s37")
    A("s_lshl_b32 s38, s26, 2")
    A("s_lshl_b32 s37, s35, 1")
    A("s_add_u32 s38, s38, s37")
    A("s_lshl_b32 s38, s38, 10")
    A("s_lshl_b32 s37, s33, 15")
    A("s_add_u32 s38, s38, s37")
    A(f"s_add_u32 s38, s38, {WS_H}")
    if which == 3:
        A(f"v_lshl_add_u32 v{vOut}, v{vTmp}, 3, v{vOut}")
        for g in range(4):
            A(f"buffer_load_dwordx2 {v(RES+2*g,2)}, v{vOut}, s[12:15], s36 offen offset:{g*16}")
        issued[0] += 4
    else:
        A(f"v_lshl_add_u32 v{vOut}, v{vTmp}, 4, v{vOut}")
        for e in range(2):
            A(f"buffer_load_dwordx4 {v(RES+4*e,4)}, v{vLo}, s[20:23], s38 offen offset:{e*1024}")
        issued[0] += 2
    for c in range(1, min(NS, NCH)):
        issue(c)
    A("s_lshl_b32 s37, s34, 10")
    A(f"v_add_u32 v{vAB[0]}, s37, v{vLo}")
    A(f"v_add_u32 v{vAB[1]}, 0x10000, v{vAB[0]}")
    A(f"v_add_u32 v{vAB[2]}, 0x20000, v{vAB[0]}")
    A(f"v_lshrrev_b32 v{vTmp}, 2, v{vL}")
    A(f"v_and_b32 v{vTmp}, 3, v{vTmp}")
    A(f"v_lshrrev_b32 v{vTmp2}, 5, v{vL}")
    A(f"v_lshl_add_u32 v{vTmp2}, v{vTmp2}, 2, v{vTmp}")
    A(f"v_lshlrev_b32 v{vWB[0]}, 7, v{vTmp2}")
    A(f"v_lshrrev_b32 v{vTmp}, 1, v{vTmp}")
    A(f"v_xor_b32 v{vTmp}, s35, v{vTmp}")
    A(f"v_lshl_add_u32 v{vWB[0]}, v{vTmp}, 6, v{vWB[0]}")
    A(f"v_lshrrev_b32 v{vTmp}, 4, v{vL}")
    A(f"v_and_b32 v{vTmp}, 1, v{vTmp}")
    A(f"v_lshl_add_u32 v{vWB[0]}, v{vTmp}, 5, v{vWB[0]}")
    A(f"v_and_b32 v{vTmp}, 3, v{vL}")
    A(f"v_lshl_add_u32 v{vWB[0]}, v{vTmp}, 3, v{vWB[0]}")
    A(f"v_add_u32 v{vWB[0]}, 0x4000, v{vWB[0]}")
    A(f"v_add_u32 v{vWB[1]}, 0x10000, v{vWB[0]}")
    A(f"v_add_u32 v{vWB[2]}, 0x20000, v{vWB[0]}")
    for c in range(NCH):
        nk = min(8, KS - 8*c)
        slot = c % NS
        A(f"s_waitcnt vmcnt({issued[0] - marks[c]})")
        A("s_barrier")
        so = (slot & 1) * 32768
        ab, wb = vAB[slot >> 1], vWB[slot >> 1]
        def rd(k):
            d = FR + k*8
            A(f"ds_read_b128 {v(d,4)}, v{ab} offset:{so + k*2048}")
            A(f"ds_read_b64_tr_b16 {v(d+4,2)}, v{wb} offset:{so + k*2048}")
            A(f"ds_read_b64_tr_b16 {v(d+6,2)}, v{wb} offset:{so + k*2048 + 1024}")
        LA = 4
        for k in range(min(LA, nk)):
            rd(k)
        if c >= 1 and c - 1 + NS < NCH:
            issue(c - 1 + NS)
        for k in range(nk):
            if k + LA < nk:
                rd(k + LA)
            out = min(nk, k + LA + 1) - (k + 1)
            A(f"s_waitcnt lgkmcnt({3*out})")
            d = FR + k*8
            cc = "0" if (c == 0 and k == 0) else v(ACC, 16)
            A(f"v_mfma_f32_32x32x16_bf16 {v(ACC,16)}, {v(d+4,4)}, {v(d,4)}, {cc}")
    T = FR
    A("s_nop 7")
    for i in range(8):
        A(f"v_lshlrev_b32 v{T+2*i}, 16, v{RES+i}")
        A(f"v_and_b32 v{T+2*i+1}, 0xffff0000, v{RES+i}")
    for r in range(16):
        A(f"v_add_f32 v{T+r}, v{T+r}, v{ACC+r}")
    for i in range(8):
        A(f"v_cvt_pk_bf16_f32 v{RES+i}, v{T+2*i}, v{T+2*i+1}")
    if which == 3:
        for e in range(2):
            A(f"buffer_store_dwordx4 {v(RES+4*e,4)}, v{vLo}, s[20:23], s38 offen offset:{e*1024}")
        for i in range(8):
            A(f"v_lshlrev_b32 v{T+2*i}, 16, v{RES+i}")
            A(f"v_and_b32 v{T+2*i+1}, 0xffff0000, v{RES+i}")
        s1, s2 = T+16, T+17
        A(f"v_add_f32 v{s1}, v{T}, v{T+1}")
        A(f"v_mul_f32 v{s2}, v{T}, v{T}")
        A(f"v_fmac_f32 v{s2}, v{T+1}, v{T+1}")
        for r in range(2, 16):
            A(f"v_add_f32 v{s1}, v{s1}, v{T+r}")
            A(f"v_fmac_f32 v{s2}, v{T+r}, v{T+r}")
        A(f"v_mov_b32 v{T+18}, v{s1}")
        A(f"v_mov_b32 v{T+19}, v{s2}")
        A(f"v_and_b32 v{vTmp}, 31, v{vL}")
        A(f"v_lshlrev_b32 v{vTmp}, 7, v{vTmp}")
        A(f"v_permlane32_swap_b32 v{s1}, v{T+18}")
        A(f"v_permlane32_swap_b32 v{s2}, v{T+19}")
        A("s_lshl_b32 s37, s33, 12")
        A("s_lshl_b32 s39, s26, 4")
        A("s_add_u32 s37, s37, s39")
        A("s_lshl_b32 s39, s35, 3")
        A("s_add_u32 s37, s37, s39")
        A(f"s_add_u32 s37, s37, {WS_ST}")
        A(f"v_add_f32 v{s1}, v{s1}, v{T+18}")
        A(f"v_add_f32 v{s2}, v{s2}, v{T+19}")
        A("s_mov_b32 exec_hi, 0")
        A(f"buffer_store_dwordx2 {v(s1,2)}, v{vTmp}, s[20:23], s37 offen")
    else:
        A("s_nop 1")
        for e in range(2):
            A(f"v_permlane32_swap_b32 v{RES+4*e}, v{RES+4*e+2}")
            A(f"v_permlane32_swap_b32 v{RES+4*e+1}, v{RES+4*e+3}")
        for e in range(2):
            A(f"buffer_store_dwordx4 {v(RES+4*e,4)}, v{vOut}, s[12:15], s36 offen offset:{e*32}")
    A.label(f"{NAME}_end")
    A("s_endpgm")
    return dict(name=NAME, vgpr=NV, agpr=0, grid=256, block=256, lds=LDS)
```

```python
from asmlib import *
from layout import *
import math

NAME = "glu_kernel"
NS = 6
LDS = NS * 24576

def gen(A):
    kernel_begin(A, NAME)
    vL, vLo, vWo, vTmp, vTmp2 = 1, 2, 3, 4, 5
    vB = [6, 7, 8]
    vMu, vRs = 9, 10
    t0, t1 = 12, 13
    ST = 16
    ACC = 32
    X = 128
    NV = 256
    A("s_cmp_ge_u32 s2, 256")
    A(f"s_cbranch_scc1 {NAME}_end")
    A("s_lshr_b32 s10, s2, 3")
    A("s_lshr_b32 s26, s10, 1")
    A("s_cmp_ge_u32 s26, 15")
    A(f"s_cbranch_scc1 {NAME}_end")
    A("s_load_dwordx4 s[4:7], s[0:1], 32")
    A("s_load_dwordx2 s[8:9], s[0:1], 72")
    A(f"v_and_b32 v{vL}, 63, v0")
    A(f"v_lshrrev_b32 v{vTmp}, 6, v0")
    A(f"v_lshlrev_b32 v{vLo}, 4, v{vL}")
    A(f"v_readfirstlane_b32 s24, v{vTmp}")
    A("s_and_b32 s3, s2, 7")
    A("s_lshl_b32 s25, s3, 1")
    A("s_and_b32 s11, s10, 1")
    A("s_add_u32 s25, s25, s11")
    A("s_lshl_b32 s33, s25, 2")
    A("s_add_u32 s33, s33, s24")
    A("s_lshl_b32 s28, s33, 15")
    A(f"s_add_u32 s28, s28, {WS_H}")
    A("s_lshl_b32 s27, s33, 12")
    A(f"s_add_u32 s27, s27, {WS_ST}")
    A("s_mul_i32 s29, s26, 192")
    A(f"s_mul_i32 s11, s24, {16*2752}")
    A("s_add_u32 s29, s29, s11")
    A("s_lshl_b32 s32, s24, 10")
    A(f"v_lshrrev_b32 v{vTmp}, 2, v{vL}")
    A(f"v_mul_u32_u24 v{vWo}, 2752, v{vTmp}")
    A(f"v_and_b32 v{vTmp}, 3, v{vL}")
    A(f"v_lshl_add_u32 v{vWo}, v{vTmp}, 4, v{vWo}")
    A(f"v_and_b32 v{vTmp}, 31, v{vL}")
    A(f"v_lshlrev_b32 v{vTmp2}, 7, v{vTmp}")
    A(f"v_lshrrev_b32 v{vTmp}, 5, v{vL}")
    A(f"v_lshl_add_u32 v{vTmp2}, v{vTmp}, 6, v{vTmp2}")
    A("s_waitcnt lgkmcnt(0)")
    srd(A, 12, 4, 512*2752)
    srd(A, 16, 6, 512*2752)
    srd(A, 20, 8, WS_SIZE)
    issued = [0]
    marks = {}
    for e in range(4):
        A(f"buffer_load_dwordx4 {v(ST+4*e,4)}, v{vTmp2}, s[20:23], s27 offen offset:{e*16}")
    issued[0] += 4
    marks["st"] = issued[0]
    def issue(c):
        slot = (c % NS) * 24576
        A(f"s_add_u32 s30, s29, {c*64*2752}")
        A(f"s_add_u32 s31, s28, {c*4096}")
        for blk in range(6):
            m, cbk = blk // 3, blk % 3
            A(f"s_add_u32 m0, s32, {slot + blk*4096 - cbk*64}")
            if blk < 4:
                A(f"buffer_load_dwordx4 {v(X+(c*4+blk)*4,4)}, v{vLo}, s[20:23], s31 offen offset:{blk*1024}")
            else:
                A("s_nop 0")
            A(f"buffer_load_dwordx4 v{vWo}, s[{12+4*m}:{15+4*m}], s30 offen offset:{cbk*64} lds")
        issued[0] += 10
        marks[c] = issued[0]
    PRE = 4
    for c in range(PRE):
        issue(c)
    A(f"v_lshrrev_b32 v{vTmp}, 2, v{vL}")
    A(f"v_and_b32 v{vTmp}, 3, v{vTmp}")
    A(f"v_lshrrev_b32 v{vTmp2}, 5, v{vL}")
    A(f"v_lshl_add_u32 v{vTmp}, v{vTmp2}, 2, v{vTmp}")
    A(f"v_lshlrev_b32 v{vB[0]}, 6, v{vTmp}")
    A(f"v_lshrrev_b32 v{vTmp}, 4, v{vL}")
    A(f"v_and_b32 v{vTmp}, 1, v{vTmp}")
    A(f"v_lshl_add_u32 v{vB[0]}, v{vTmp}, 5, v{vB[0]}")
    A(f"v_and_b32 v{vTmp}, 3, v{vL}")
    A(f"v_lshl_add_u32 v{vB[0]}, v{vTmp}, 3, v{vB[0]}")
    A(f"v_add_u32 v{vB[1]}, {2*24576}, v{vB[0]}")
    A(f"v_add_u32 v{vB[2]}, {4*24576}, v{vB[0]}")
    A(f"s_waitcnt vmcnt({issued[0] - marks['st']})")
    for e in range(1, 8):
        A(f"v_add_f32 v{ST}, v{ST}, v{ST+2*e}")
        A(f"v_add_f32 v{ST+1}, v{ST+1}, v{ST+2*e+1}")
    A(f"v_mov_b32 v{ST+2}, v{ST}")
    A(f"v_mov_b32 v{ST+3}, v{ST+1}")
    A(f"s_mov_b32 s30, {f32bits(1.0/512):#x}")
    A(f"s_mov_b32 s31, {f32bits(1e-5):#x}")
    A(f"v_permlane32_swap_b32 v{ST}, v{ST+2}")
    A(f"v_permlane32_swap_b32 v{ST+1}, v{ST+3}")
    A("s_nop 1")
    A(f"v_add_f32 v{ST}, v{ST}, v{ST+2}")
    A(f"v_add_f32 v{ST+1}, v{ST+1}, v{ST+3}")
    m, r = vMu, vRs
    A(f"v_mul_f32 v{m}, s30, v{ST}")
    A(f"v_mul_f32 v{r}, s30, v{ST+1}")
    A(f"v_fma_f32 v{r}, -v{m}, v{m}, v{r}")
    A(f"v_max_f32 v{r}, 0, v{r}")
    A(f"v_cvt_pk_bf16_f32 v{t0}, v{m}, v{r}")
    A(f"v_lshlrev_b32 v{m}, 16, v{t0}")
    A(f"v_and_b32 v{r}, 0xffff0000, v{t0}")
    A(f"v_add_f32 v{r}, s31, v{r}")
    A(f"v_cvt_pk_bf16_f32 v{t0}, v{r}, v{r}")
    A(f"v_and_b32 v{r}, 0xffff0000, v{t0}")
    A(f"v_sqrt_f32 v{r}, v{r}")
    A("s_nop 0")
    A(f"v_cvt_pk_bf16_f32 v{t0}, v{r}, v{r}")
    A(f"v_and_b32 v{r}, 0xffff0000, v{t0}")
    A(f"v_rcp_f32 v{r}, v{r}")
    A("s_nop 0")
    A(f"v_mul_f32 v{m}, v{m}, v{r}")
    A(f"v_sub_f32 v{m}, 0, v{m}")

    def norm_ops(ks):
        ops = []
        for i in range(4):
            x = X + ks*4 + i
            a0, a1 = ST + 2*(i & 3), ST + 2*(i & 3) + 1
            ops += [f"v_lshlrev_b32 v{a0}, 16, v{x}", f"v_and_b32 v{a1}, 0xffff0000, v{x}"]
        for i in range(4):
            a0, a1 = ST + 2*i, ST + 2*i + 1
            ops += [f"v_fma_f32 v{a0}, v{a0}, v{vRs}, v{vMu}", f"v_fma_f32 v{a1}, v{a1}, v{vRs}, v{vMu}"]
        for i in range(4):
            ops += [f"v_cvt_pk_bf16_f32 v{X+ks*4+i}, v{ST+2*i}, v{ST+2*i+1}"]
        return ops
    def reads(ks, buf):
        c, k = ks >> 2, ks & 3
        slot = c % NS
        base = vB[slot >> 1]
        for blk in range(6):
            off = (slot & 1)*24576 + blk*4096 + k*1024
            d = (buf*6 + blk)*4
            A(f"ds_read_b64_tr_b16 {a(d,2)}, v{base} offset:{off}")
            A(f"ds_read_b64_tr_b16 {a(d+2,2)}, v{base} offset:{off+512}")
    def sync(c):
        A(f"s_waitcnt vmcnt({issued[0] - marks[c]})")
        A("s_barrier")
    sync(0)
    reads(0, 0)
    for op in norm_ops(0): A(op)
    for ks in range(32):
        c, k = ks >> 2, ks & 3
        buf = ks & 1
        nxt = ks + 1
        if nxt < 32:
            if (nxt & 3) == 0:
                sync(nxt >> 2)
            reads(nxt, buf ^ 1)
            fill = norm_ops(nxt)
            A("s_waitcnt lgkmcnt(12)")
        else:
            fill = []
            A("s_waitcnt lgkmcnt(0)")
        for blk in range(6):
            acc = v(ACC + blk*16, 16)
            cc = "0" if ks == 0 else acc
            A(f"v_mfma_f32_32x32x16_bf16 {acc}, {a((buf*6+blk)*4,4)}, {v(X+ks*4,4)}, {cc}")
            for op in fill[blk*4:(blk+1)*4] if blk < 5 else fill[20:]:
                A(op)
        if k == 0:
            n = c + PRE
            if n < 8:
                assert n - NS <= c - 2 or n < NS
                issue(n)
    A("s_mul_i32 s34, s33, 86")
    A("s_mul_i32 s35, s26, 6")
    A("s_add_u32 s34, s34, s35")
    A("s_lshl_b32 s34, s34, 10")
    A(f"s_add_u32 s34, s34, {WS_HH}")
    A(f"s_mov_b32 s36, {f32bits(-math.log2(math.e)):#x}")
    A("s_nop 7")
    for cbk in range(3):
        G, U = ACC + cbk*16, ACC + (3+cbk)*16
        if cbk == 1:
            A("s_cmp_eq_u32 s26, 14")
            A(f"s_cbranch_scc1 {NAME}_end")
        for r in range(16): A(f"v_mul_f32 v{G+r}, s36, v{G+r}")
        for r in range(16): A(f"v_exp_f32 v{G+r}, v{G+r}")
        for r in range(16): A(f"v_add_f32 v{G+r}, 1.0, v{G+r}")
        for r in range(16): A(f"v_rcp_f32 v{G+r}, v{G+r}")
        for r in range(16): A(f"v_mul_f32 v{G+r}, v{G+r}, v{U+r}")
        for i in range(8): A(f"v_cvt_pk_bf16_f32 v{U+i}, v{G+2*i}, v{G+2*i+1}")
        for e in range(2):
            A(f"buffer_store_dwordx4 {v(U+4*e,4)}, v{vLo}, s[20:23], s34 offen offset:{e*1024}")
        A("s_add_u32 s34, s34, 2048")
    A.label(f"{NAME}_end")
    A("s_endpgm")
    return dict(name=NAME, vgpr=NV, agpr=48, grid=256, block=256, lds=LDS)
```

```python
MB = 1 << 20
WS_Q = 0
WS_K = 2 * MB
WS_V = 4 * MB
WS_O = 6 * MB
WS_H = 8 * MB
WS_ST = 10 * MB
WS_FL = 10 * MB + 512 * 1024
WS_HH = 11 * MB
HHKS = 88
WS_SIZE = 24 * MB
import math
QSCALE = 0.25 * math.log2(math.e)
def f32bits(x):
    import struct
    return struct.unpack("<I", struct.pack("<f", x))[0]
```

```python
import sys, os
sys.path.insert(0, os.path.dirname(__file__))
from asmlib import *
import k1, k2, k35, k4
HEAD = open("sequential_preLN__mha_block__glu_gated_glu__prompt.s.ref").read().split("; Override launch")[0]
def build(out):
    A = Asm()
    ks = []
    ks.append(k1.gen(A))
    ks.append(k2.gen(A))
    ks.append(k35.gen(A, 3))
    ks.append(k4.gen(A))
    ks.append(k35.gen(A, 5))
    txt = HEAD
    for k in ks:
        txt += f"; @launch kernel={k['name']} grid=({k['grid']},1,1) block=({k['block']},1,1) lds={k['lds']}\n"
    txt += '.amdgcn_target "amdgcn-amd-amdhsa--gfx950"\n.text\n'
    txt += A.text()
    txt += '.section .rodata,"a"\n'
    for k in ks:
        txt += descriptor(k['name'], k['vgpr'], k['agpr'])
    open(out, "w").write(txt)
if __name__ == "__main__":
    build(sys.argv[1] if len(sys.argv) > 1 else "sequential_preLN__mha_block__glu_gated_glu__prompt.s")
```

```python
class Asm:
    def __init__(self):
        self.lines = []
    def __call__(self, s, *a):
        for ln in s.strip("\n").split("\n"):
            if self.drop and any(ln.strip().startswith(d) for d in self.drop): continue
            self.lines.append("    " + ln.strip() if not ln.strip().endswith(":") else ln.strip())
    def label(self, n):
        self.lines.append(f"{n}:")
    def raw(self, s):
        self.lines.append(s)
    def comment(self, s):
        self.lines.append(f"    ; {s}")
    diag = False
    import os as _os
    drop = [d for d in _os.environ.get('DROP','').split(',') if d]
    nst = 0
    def stamp(self):
        if not self.diag: return
        i = self.nst; self.nst += 1
        assert i < 14
        self(f"s_memtime s[{64+2*i}:{65+2*i}]") if i else self(f"s_memrealtime s[64:65]\ns_memtime s[66:67]")
        if i == 0: self.nst = 2
    def dump(self, kidx, nwaves, wave_sgpr, srd=20, keep=False):
        if not self.diag: return
        i = self.nst
        self(f"s_memtime s[{64+2*i}:{65+2*i}]")
        self(f"s_memrealtime s[{66+2*i}:{67+2*i}]")
        n = i + 2
        self("s_waitcnt lgkmcnt(0)")
        self("s_mov_b64 exec, 1")
        self(f"s_mul_i32 s62, s2, {nwaves}")
        self(f"s_add_u32 s62, s62, s{wave_sgpr}")
        self("s_lshl_b32 s62, s62, 7")
        self(f"s_add_u32 s62, s62, {(20<<20) + kidx*(1<<19)}")
        self("v_mov_b32 v0, 0")
        for k in range(n):
            self(f"v_mov_b32 v2, s{64+2*k}")
            self(f"v_mov_b32 v3, s{65+2*k}")
            self(f"buffer_store_dwordx2 v[2:3], v0, s[{srd}:{srd+3}], s62 offen offset:{8*k}")
            self("s_nop 1")
        self(f"v_mov_b32 v2, {n}")
        self(f"buffer_store_dword v2, v0, s[{srd}:{srd+3}], s62 offen offset:124")
        if not keep: self.nst = 0
    def text(self):
        return "\n".join(self.lines) + "\n"

def v(i, n=1):
    return f"v{i}" if n == 1 else f"v[{i}:{i+n-1}]"
def a(i, n=1):
    return f"a{i}" if n == 1 else f"a[{i}:{i+n-1}]"
def s(i, n=1):
    return f"s{i}" if n == 1 else f"s[{i}:{i+n-1}]"

def srd(A, d, ptr, nbytes, add=0):
    if add:
        A(f"s_add_u32 s{d}, s{ptr}, {add:#x}")
        A(f"s_addc_u32 s{d+1}, s{ptr+1}, 0")
    else:
        A(f"s_mov_b32 s{d}, s{ptr}")
        A(f"s_mov_b32 s{d+1}, s{ptr+1}")
    A(f"s_mov_b32 s{d+2}, {nbytes:#x}")
    A(f"s_mov_b32 s{d+3}, 0x20000")

def kernel_begin(A, name):
    A.raw(f".globl {name}")
    A.raw(".p2align 8")
    A.raw(f".type {name},@function")
    A.label(name)

def descriptor(name, vgpr, agpr=0, sgpr=96):
    acc = (vgpr + 3) // 4 * 4
    nfv = acc + agpr if agpr else vgpr
    return f""".p2align 6
.amdhsa_kernel {name}
  .amdhsa_next_free_vgpr {nfv}
  .amdhsa_next_free_sgpr {sgpr}
  .amdhsa_accum_offset {acc}
  .amdhsa_group_segment_fixed_size 0
  .amdhsa_kernarg_size 80
  .amdhsa_user_sgpr_count 2
  .amdhsa_user_sgpr_kernarg_segment_ptr 1
  .amdhsa_system_sgpr_workgroup_id_x 1
  .amdhsa_float_denorm_mode_32 3
  .amdhsa_float_denorm_mode_16_64 3
.end_amdhsa_kernel
"""
```

```python
from asmlib import *
from layout import *

NAME = "qkv_kernel"
SLOT = 28672
NS = 5
CS = NS * SLOT
GR = CS + 2048
GST = 144
LDS = GR + 4 * 32 * GST
BIG = 0x40000000
import os
D = int(os.environ.get('K1D','2'))

def gen(A, prefetch=None):
    kernel_begin(A, NAME)
    vL, vLo, vTmp, vTmp2 = 1, 2, 3, 4
    vXd = [5, 6, 7, 8]
    vWd = 9
    vXb = [10, 11, 12, 13]
    vWb = 14
    vXr = [15, 16, 17, 18]
    vWr = 19
    SEL = 20
    SX = 24
    CSA = 28
    ACC = 40
    GRM = 88
    FR = 104
    NV = 136
    A("s_cmp_ge_u32 s2, 256")
    A(f"s_cbranch_scc1 {NAME}_end")
    A.stamp()
    A("s_load_dwordx4 s[4:7], s[0:1], 0")
    A("s_load_dwordx2 s[8:9], s[0:1], 72")
    A(f"v_lshrrev_b32 v{vTmp}, 6, v0")
    A(f"v_and_b32 v{vL}, 63, v0")
    A(f"v_readfirstlane_b32 s23, v{vTmp}")
    A("s_and_b32 s3, s2, 7")
    A("s_lshr_b32 s10, s2, 3")
    A("s_lshr_b32 s25, s3, 1")
    A("s_lshl_b32 s25, s25, 2")
    A("s_and_b32 s11, s10, 3")
    A("s_add_u32 s25, s25, s11")
    A("s_and_b32 s26, s3, 1")
    A("s_lshl_b32 s26, s26, 3")
    A("s_lshr_b32 s27, s10, 2")
    A("s_add_u32 s26, s26, s27")
    A("s_and_b32 s24, s23, 3")
    A("s_lshl_b32 s28, s25, 2")
    A("s_add_u32 s33, s28, s24")
    A("s_lshl_b32 s34, s24, 12")
    A("s_cmp_lt_u32 s23, 4")
    A(f"s_cbranch_scc1 {NAME}_comp")

    def wbase():
        A(f"v_lshrrev_b32 v{vTmp2}, 5, v{vL}")
        A(f"v_bfe_u32 v{vTmp}, v{vL}, 2, 2")
        A(f"v_lshl_add_u32 v{vTmp}, v{vTmp2}, 3, v{vTmp}")
        A(f"v_lshlrev_b32 v{vWb}, 6, v{vTmp}")
        A(f"v_bfe_u32 v{vTmp}, v{vL}, 4, 1")
        A(f"v_lshl_add_u32 v{vWb}, v{vTmp}, 5, v{vWb}")
        A(f"v_and_b32 v{vTmp}, 3, v{vL}")
        A(f"v_lshl_add_u32 v{vWb}, v{vTmp}, 3, v{vWb}")
        A(f"v_add_u32 v{vWb}, 16384, v{vWb}")
    def sel():
        A(f"v_lshrrev_b32 v{vTmp}, 2, v{vL}")
        A(f"v_xor_b32 v{vTmp}, v{vTmp}, v{vL}")
        A(f"v_bfe_u32 v{vTmp}, v{vTmp}, 2, 1")
        A(f"v_add_u32 v{vTmp}, -1, v{vTmp}")
        for r in range(4):
            A(f"v_and_b32 v{SEL+r}, 0x3f803f80, v{vTmp}")

    if os.environ.get("HPRIO"): A(f"s_setprio {os.environ['HPRIO']}")
    A("s_lshl_b32 s11, s11, 1")
    A("s_add_u32 s27, s27, s11")
    A("s_lshl_b32 s28, s33, 15")
    A("s_mul_i32 s29, s26, 192")
    A(f"s_mul_i32 s11, s24, {16*3072}")
    A("s_add_u32 s29, s29, s11")
    A("s_lshl_b32 s35, s24, 10")
    A("s_add_u32 s35, s35, 16384")
    A(f"v_lshrrev_b32 v{vTmp}, 3, v{vL}")
    A(f"v_lshlrev_b32 v{vXd[0]}, 10, v{vTmp}")
    A(f"v_lshrrev_b32 v{vTmp}, 4, v{vL}")
    A(f"v_and_b32 v{vTmp2}, 7, v{vL}")
    A(f"v_xor_b32 v{vTmp}, v{vTmp}, v{vTmp2}")
    A(f"v_lshl_add_u32 v{vXd[0]}, v{vTmp}, 4, v{vXd[0]}")
    A(f"v_xor_b32 v{vXd[1]}, 0x2040, v{vXd[0]}")
    A(f"v_xor_b32 v{vXd[2]}, 0x4000, v{vXd[0]}")
    A(f"v_xor_b32 v{vXd[3]}, 0x6040, v{vXd[0]}")
    A(f"v_lshrrev_b32 v{vTmp}, 2, v{vL}")
    A(f"v_mul_u32_u24 v{vWd}, 3072, v{vTmp}")
    A(f"v_and_b32 v{vTmp}, 3, v{vL}")
    A(f"v_lshl_add_u32 v{vWd}, v{vTmp}, 4, v{vWd}")
    A("s_mov_b32 s36, 0")
    A("s_mov_b32 s37, 0")
    A(f"s_mov_b32 s14, {2048*1024:#x}")
    A("s_mov_b32 s15, 0x20000")
    A(f"s_mov_b32 s18, {512*3072:#x}")
    A("s_mov_b32 s19, 0x20000")
    A("s_waitcnt lgkmcnt(0)")
    A("s_mov_b64 s[12:13], s[4:5]")
    A("s_mov_b64 s[16:17], s[6:7]")
    def issue(fill=()):
        fill = list(fill)
        per = (len(fill) + 5) // 6
        def f():
            n = 0
            for _ in range(per):
                if fill:
                    A(fill.pop(0)); n += 1
            if n == 0: A("s_nop 0")
        for op in ["s_add_u32 s30, s27, s36", "s_and_b32 s30, s30, 7", "s_lshl_b32 s31, s30, 7", "s_add_u32 s31, s31, s28",
                   f"s_mul_i32 s30, s30, {64*3072}", "s_add_u32 s30, s30, s29",
                   "s_add_u32 m0, s37, s35",
                   "s_cmp_lt_u32 s36, 8", f"s_cselect_b32 s30, s30, {BIG:#x}", f"s_cselect_b32 s31, s31, {BIG:#x}",
                   "s_add_u32 s38, s37, s34", "s_add_u32 s36, s36, 1",
                   f"s_add_u32 s37, s37, {SLOT}", f"s_cmp_eq_u32 s37, {NS*SLOT}", "s_cselect_b32 s37, 0, s37"]:
            A(op)
        for blk in range(3):
            A(f"buffer_load_dwordx4 v{vWd}, s[16:19], s30 offen offset:{blk*64} lds")
            A(f"s_add_u32 m0, m0, {4096-64}" if blk < 2 else "s_mov_b32 m0, s38")
            if blk == 0 and fill: A("s_waitcnt lgkmcnt(0)")
            f()
        for e in range(4):
            A(f"buffer_load_dwordx4 v{vXd[e]}, s[12:15], s31 offen lds")
            if e < 3:
                A("s_add_u32 m0, m0, 1024")
                f()
        assert not fill
    A.label(f"{NAME}_pro")
    issue()
    A(f"s_cmp_lt_u32 s36, {D}")
    A(f"s_cbranch_scc1 {NAME}_pro")
    npf = 0
    wbase()
    A("s_lshl_b32 s11, s24, 10")
    A(f"v_add_u32 v{vWb}, s11, v{vWb}")
    for r in range(12):
        A(f"v_mov_b32 v{CSA+r}, 0")
    A("s_mov_b32 s40, 0")
    A("s_mov_b32 s41, 0")
    A.stamp()
    A(f"s_waitcnt vmcnt({7*(D-1)})")
    A.label(f"{NAME}_hloop")
    A("s_barrier")
    A(f"v_add_u32 v{vWr}, s40, v{vWb}")
    A(f"s_add_u32 s40, s40, {SLOT}")
    A(f"s_cmp_eq_u32 s40, {NS*SLOT}")
    A("s_cselect_b32 s40, 0, s40")
    for blk in range(3):
        for rd in range(2):
            A(f"ds_read_b64_tr_b16 {v(FR+blk*4+rd*2,2)}, v{vWr} offset:{blk*4096 + rd*256}")
    ops = []
    for blk in range(3):
        t = FR + 16 + (blk & 1) * 8
        for i in range(4):
            ops.append(f"v_lshlrev_b32 v{t+2*i}, 16, v{FR+4*blk+i}")
            ops.append(f"v_and_b32 v{t+2*i+1}, 0xffff0000, v{FR+4*blk+i}")
        for i in range(8):
            ops.append(f"v_add_f32 v{CSA+4*blk+(i&3)}, v{CSA+4*blk+(i&3)}, v{t+i}")
    issue(ops)
    A("s_add_u32 s41, s41, 1")
    A("s_cmp_lt_u32 s41, 8")
    A(f"s_waitcnt vmcnt({7*(D-1)})")
    A(f"s_cbranch_scc1 {NAME}_hloop")
    A(f"v_and_b32 v{vTmp}, 31, v{vL}")
    A(f"v_lshlrev_b32 v{vTmp}, 2, v{vTmp}")
    A("s_mul_i32 s11, s24, 384")
    A(f"s_add_u32 s11, s11, {CS}")
    A(f"v_add_u32 v{vTmp}, s11, v{vTmp}")
    for blk in range(3):
        c = CSA + 4*blk
        A(f"v_add_f32 v{c}, v{c}, v{c+1}")
        A(f"v_add_f32 v{c+2}, v{c+2}, v{c+3}")
    for blk in range(3):
        c = CSA + 4*blk
        A(f"v_add_f32 v{c}, v{c}, v{c+2}")
    for blk in range(3):
        c = CSA + 4*blk
        A(f"v_mov_b32 v{c+1}, v{c}")
    A("s_nop 1")
    for blk in range(3):
        c = CSA + 4*blk
        A(f"v_permlane32_swap_b32 v{c}, v{c+1}")
    A("s_nop 1")
    for blk in range(3):
        c = CSA + 4*blk
        A(f"v_add_f32 v{c}, v{c}, v{c+1}")
    for blk in range(3):
        A(f"ds_write_b32 v{vTmp}, v{CSA+4*blk} offset:{blk*128}")
    A("s_waitcnt lgkmcnt(0)")
    A("s_barrier")
    A(f"v_and_b32 v{vTmp}, 31, v{vL}")
    A(f"v_lshlrev_b32 v{vTmp}, 2, v{vTmp}")
    A("s_lshl_b32 s11, s24, 7")
    A(f"s_add_u32 s11, s11, {CS}")
    A(f"v_add_u32 v{vTmp}, s11, v{vTmp}")
    for p in range(4):
        A(f"ds_read_b32 v{CSA+p}, v{vTmp} offset:{p*384}")
    A("s_waitcnt lgkmcnt(0)")
    A(f"v_add_f32 v{CSA}, v{CSA}, v{CSA+1}")
    A(f"v_add_f32 v{CSA+2}, v{CSA+2}, v{CSA+3}")
    A(f"v_add_f32 v{CSA}, v{CSA}, v{CSA+2}")
    A(f"ds_write_b32 v{vTmp}, v{CSA} offset:1536")
    A("s_waitcnt lgkmcnt(0)")
    A("s_barrier")
    A("s_endpgm")

    A.label(f"{NAME}_comp")
    A.nst = 2 if A.diag else 0
    if prefetch: prefetch(A, vTmp, vWd, vL, "qkv")
    A(f"v_lshlrev_b32 v{vLo}, 4, v{vL}")
    A(f"v_and_b32 v{vTmp}, 31, v{vL}")
    A(f"v_lshlrev_b32 v{vXb[0]}, 7, v{vTmp}")
    A(f"v_bfe_u32 v{vTmp}, v{vL}, 1, 3")
    A(f"v_lshrrev_b32 v{vTmp2}, 5, v{vL}")
    A(f"v_xor_b32 v{vTmp}, v{vTmp}, v{vTmp2}")
    A(f"v_lshl_add_u32 v{vXb[0]}, v{vTmp}, 4, v{vXb[0]}")
    A(f"v_add_u32 v{vXb[0]}, s34, v{vXb[0]}")
    for k in range(1, 4):
        A(f"v_xor_b32 v{vXb[k]}, {k*32}, v{vXb[0]}")
    wbase()
    for k in range(4):
        A(f"v_mov_b32 v{vXr[k]}, v{vXb[k]}")
    A(f"v_mov_b32 v{vWr}, v{vWb}")
    sel()
    for r in list(range(SX, SX+4)) + list(range(ACC, GRM + 16)):
        A(f"v_mov_b32 v{r}, 0")
    vA1, vA2, vA3 = vXd[0], vXd[1], vXd[2]
    A(f"v_and_b32 v{vTmp}, 31, v{vL}")
    A(f"v_lshrrev_b32 v{vTmp2}, 5, v{vL}")
    A(f"s_mul_i32 s30, s24, {32*GST}")
    A(f"s_add_u32 s30, s30, {GR}")
    A(f"v_mul_u32_u24 v{vA2}, {GST}, v{vTmp}")
    A(f"v_add_u32 v{vA2}, s30, v{vA2}")
    A(f"v_lshl_add_u32 v{vA3}, v{vTmp}, 2, v{vA2}")
    A(f"v_lshl_add_u32 v{vA2}, v{vTmp2}, 4, v{vA2}")
    A(f"v_lshlrev_b32 v{vA1}, 4, v{vTmp2}")
    A(f"v_add_u32 v{vA1}, {CS+1536}, v{vA1}")
    A("s_mul_i32 s34, s26, 6")
    A("s_lshl_b32 s35, s33, 10")
    A("s_lshl_b32 s38, s34, 16")
    A("s_add_u32 s38, s38, s35")
    A(f"s_mov_b32 s36, {f32bits(QSCALE):#x}")
    for blk in range(3):
        A(f"s_add_u32 s37, s34, {2*blk}")
        A("s_cmp_lt_u32 s37, 32")
        A(f"s_cselect_b32 s{42+blk}, s36, 1.0")
    A(f"s_mov_b32 s30, {f32bits(1.0/512):#x}")
    A(f"s_mov_b32 s31, {f32bits(1e-5):#x}")
    A("s_mov_b32 s40, 0")
    A("s_mov_b32 s41, 0")
    A("s_waitcnt lgkmcnt(0)")
    srd(A, 20, 8, WS_SIZE)
    if os.environ.get("NOTOUCH1") != "1":
        A(f"v_lshrrev_b32 v{vTmp}, 3, v{vL}")
        A(f"v_min_u32 v{vTmp}, 5, v{vTmp}")
        A(f"v_lshlrev_b32 v{vTmp}, 16, v{vTmp}")
        A(f"v_and_b32 v{vTmp2}, 7, v{vL}")
        A(f"v_lshl_add_u32 v{vTmp}, v{vTmp2}, 7, v{vTmp}")
    A.stamp()
    A("s_barrier")
    if os.environ.get("NOTOUCH1") != "1":
        A(f"buffer_load_dword v{vWd}, v{vTmp}, s[20:23], s38 offen")
    A.stamp()

    def read_ops(k, buf):
        d = FR + buf*16
        ops = [f"ds_read_b128 {v(d,4)}, v{vXr[k]}"]
        for blk in range(3):
            for rd in range(2):
                ops.append(f"ds_read_b64_tr_b16 {v(d+4+blk*4+rd*2,2)}, v{vWr} offset:{blk*4096 + k*1024 + rd*256}")
        return ops
    def kstep(k, extra=None, reads=True):
        buf = k & 1
        d = FR + buf*16
        x = v(d, 4)
        rd = read_ops((k + 1) & 3, buf ^ 1) if reads else [[]]*0
        mf = [f"v_mfma_f32_32x32x16_bf16 {v(GRM,16)}, {x}, {x}, {v(GRM,16)}",
              f"v_mfma_f32_16x16x32_bf16 {v(SX,4)}, {v(SEL,4)}, {x}, {v(SX,4)}"]
        for blk in range(3):
            mf.append(f"v_mfma_f32_32x32x16_bf16 {v(ACC+16*blk,16)}, {v(d+4+4*blk,4)}, {x}, {v(ACC+16*blk,16)}")
        A("s_waitcnt lgkmcnt(0)")
        fill = [rd[0:3], rd[3:4], rd[4:7], [], []]
        for i in range(5):
            A(mf[i])
            if extra and i in extra:
                for op in extra[i]: A(op)
            for op in fill[i]: A(op)
    for op in read_ops(0, 0): A(op)
    A.raw(".p2align 6")
    A.label(f"{NAME}_loop")
    kstep(0)
    kstep(1)
    kstep(2, {3: [f"s_add_u32 s40, s40, {SLOT}", f"s_cmp_eq_u32 s40, {NS*SLOT}", "s_cselect_b32 s40, 0, s40", "s_add_u32 s41, s41, 1"],
              4: [f"v_add_u32 v{vXr[k]}, s40, v{vXb[k]}" for k in range(4)] + [f"v_add_u32 v{vWr}, s40, v{vWb}", "s_cmp_eq_u32 s41, 8"]})
    A(f"s_cbranch_scc1 {NAME}_epi")
    kstep(3, {0: ["s_barrier"]})
    A(f"s_branch {NAME}_loop")

    A.label(f"{NAME}_epi")
    A.stamp()
    kstep(3, {0: ["s_barrier"]}, reads=False)
    A("s_nop 7")
    for g_ in range(4):
        A(f"ds_write_b128 v{vA2}, {v(GRM+4*g_,4)} offset:{g_*32}")
    vS2 = vXd[3]
    A(f"ds_read_b32 v{vS2}, v{vA3}")
    m, r, t0 = vXb[0], vXb[1], vXb[2]
    A(f"v_mul_f32 v{m}, s30, v{SX}")
    A("s_barrier")
    C0 = GRM
    for blk in range(3):
        for g_ in range(4):
            A(f"ds_read_b128 {v(C0+16*blk+4*g_,4)}, v{vA1} offset:{blk*128 + g_*32}")
    A("s_waitcnt lgkmcnt(12)")
    A(f"v_mul_f32 v{r}, s30, v{vS2}")
    A(f"v_fma_f32 v{r}, -v{m}, v{m}, v{r}")
    A(f"v_max_f32 v{r}, 0, v{r}")
    A(f"v_cvt_pk_bf16_f32 v{t0}, v{m}, v{r}")
    A(f"v_lshlrev_b32 v{m}, 16, v{t0}")
    A(f"v_and_b32 v{r}, 0xffff0000, v{t0}")
    A(f"v_add_f32 v{r}, s31, v{r}")
    A(f"v_cvt_pk_bf16_f32 v{t0}, v{r}, v{r}")
    A(f"v_and_b32 v{r}, 0xffff0000, v{t0}")
    A(f"v_sqrt_f32 v{r}, v{r}")
    A(f"v_sub_f32 v{m}, 0, v{m}")
    A(f"v_cvt_pk_bf16_f32 v{t0}, v{r}, v{r}")
    A(f"v_and_b32 v{r}, 0xffff0000, v{t0}")
    A(f"v_rcp_f32 v{r}, v{r}")
    rs = SEL
    for blk in range(3):
        A(f"s_waitcnt lgkmcnt({8-4*blk})")
        A(f"v_mul_f32 v{rs}, s{42+blk}, v{r}")
        for i in range(0, 16, 2):
            A(f"v_pk_fma_f32 {v(ACC+16*blk+i,2)}, {v(C0+16*blk+i,2)}, {v(m,2)}, {v(ACC+16*blk+i,2)} op_sel_hi:[1,0,1]")
        for i in range(0, 16, 2):
            A(f"v_pk_mul_f32 {v(ACC+16*blk+i,2)}, {v(ACC+16*blk+i,2)}, {v(rs,2)} op_sel_hi:[1,0]")
        for i in range(8):
            A(f"v_cvt_pk_bf16_f32 v{ACC+16*blk+i}, v{ACC+16*blk+2*i}, v{ACC+16*blk+2*i+1}")
        for e in range(2):
            A(f"buffer_store_dwordx4 {v(ACC+16*blk+4*e,4)}, v{vLo}, s[20:23], s38 offen")
            A("s_add_u32 s38, s38, 0x10000")
    A.dump(0, 4, 24)
    A.label(f"{NAME}_end")
    A("s_endpgm")
    return dict(name=NAME, vgpr=NV, agpr=0, grid=256, block=512, lds=LDS, dwaves=4)
```

```python
from asmlib import *
from layout import *
import os

NAME = "attn_kernel"
ONESB = 131072
SCR = ONESB + 8192
LDS = SCR + 16384

def gen(A, pf):
    kernel_begin(A, NAME)
    vL = 1
    vK, vV, vInc, vTmp, vTmp2, vLo = 2, 3, 4, 5, 6, 7
    QF = 8
    KF = 16
    VF = 20
    P = 36
    S = 44
    O = 76
    vD, vDum, vV0, vPf = 108, 109, 110, 111
    NV = 112
    A("s_cmp_ge_u32 s2, 256")
    A(f"s_cbranch_scc1 {NAME}_end")
    A.stamp()
    A("s_load_dwordx2 s[8:9], s[0:1], 72")
    pf.loads(A)
    A(f"v_lshrrev_b32 v{vTmp}, 6, v0")
    A(f"v_and_b32 v{vL}, 63, v0")
    A(f"v_readfirstlane_b32 s24, v{vTmp}")
    A(f"v_lshlrev_b32 v{vLo}, 4, v{vL}")
    A("s_and_b32 s3, s2, 7")
    A("s_lshl_b32 s3, s3, 2")
    A("s_bfe_u32 s10, s2, 0x20003")
    A("s_add_u32 s25, s3, s10")
    A("s_lshr_b32 s26, s2, 5")
    A("s_lshl_b32 s27, s25, 16")
    A("s_and_b32 s33, s24, 3")
    A("s_lshr_b32 s34, s24, 2")
    A("s_lshl_b32 s42, s34, 14")
    A("s_and_b32 s35, s24, 1")
    A("s_bfe_u32 s36, s24, 0x10001")
    A("s_lshl_b32 s36, s36, 10")
    A("s_add_u32 s36, s36, s42")
    A("s_lshl_b32 s32, s35, 16")
    A("s_add_u32 s32, s32, s36")
    A("s_lshl_b32 s29, s35, 21")
    A("s_add_u32 s29, s29, s36")
    A("s_add_u32 s29, s29, s27")
    A(f"s_add_u32 s29, s29, {WS_K}")
    A("s_lshl_b32 s28, s26, 2")
    A("s_add_u32 s28, s28, s33")
    A("s_lshl_b32 s28, s28, 11")
    A("s_add_u32 s28, s28, s27")
    A(f"v_lshrrev_b32 v{vTmp2}, 5, v{vL}")
    A(f"v_mul_u32_u24 v{vTmp}, s35, v{vTmp2}")
    A(f"v_lshlrev_b32 v{vTmp}, 6, v{vTmp}")
    A(f"v_xor_b32 v{vD}, v{vTmp}, v{vLo}")
    A(f"s_mov_b32 s22, {WS_SIZE:#x}")
    A("s_mov_b32 s23, 0x20000")
    A("s_mov_b32 m0, s32")
    A("s_waitcnt lgkmcnt(0)")
    A("s_mov_b64 s[20:21], s[8:9]")
    A(f"buffer_load_dwordx4 v{vD}, s[20:23], s29 offen lds")
    A(f"buffer_load_dwordx4 {v(QF,4)}, v{vLo}, s[20:23], s28 offen")
    A(f"buffer_load_dwordx4 {v(QF+4,4)}, v{vLo}, s[20:23], s28 offen offset:1024")
    A(f"buffer_load_dwordx4 v{vD}, s[20:23], s29 offen offset:2048 lds")
    A(f"v_and_b32 v{vTmp}, 2, v0")
    A(f"v_add_u32 v{vTmp}, -1, v{vTmp}")
    A(f"v_ashrrev_i32 v{vTmp}, 31, v{vTmp}")
    A(f"v_and_b32 v{P}, 0x3f80, v{vTmp}")
    A(f"v_mov_b32 v{P+1}, 0")
    A(f"v_lshlrev_b32 v{vTmp}, 3, v0")
    A(f"v_add_u32 v{vTmp}, {ONESB}, v{vTmp}")
    A(f"ds_write_b64 v{vTmp}, {v(P,2)}")
    A(f"v_add_u32 v{vK}, s42, v{vLo}")
    A(f"v_and_b32 v{vTmp}, 1, v{vL}")
    A(f"v_lshlrev_b32 v{vV0}, 9, v{vTmp}")
    A(f"v_xor_b32 v{vTmp}, v{vTmp}, v{vTmp2}")
    A(f"v_lshl_add_u32 v{vV0}, v{vTmp}, 6, v{vV0}")
    A(f"v_bfe_u32 v{vTmp}, v{vL}, 2, 2")
    A(f"v_lshl_add_u32 v{vV0}, v{vTmp}, 4, v{vV0}")
    A(f"v_bfe_u32 v{vTmp}, v{vL}, 1, 1")
    A(f"v_lshl_add_u32 v{vV0}, v{vTmp}, 3, v{vV0}")
    A("s_add_u32 s43, s42, 0x10000")
    A(f"v_add_u32 v{vV}, s43, v{vV0}")
    A(f"v_and_b32 v{vTmp}, 15, v{vL}")
    A(f"v_lshlrev_b32 v{vTmp}, 3, v{vTmp}")
    A(f"v_add_u32 v{vTmp}, {ONESB+128}, v{vTmp}")
    A(f"v_and_b32 v{vTmp2}, 16, v{vL}")
    A(f"v_cmp_eq_u32 s[38:39], 0, v{vTmp2}")
    A(f"v_mov_b32 v{vInc}, 2048")
    for r in range(4):
        A(f"v_mov_b32 v{P+4+r}, 0")
    A(f"v_cndmask_b32 v{vV}, v{vTmp}, v{vV}, s[38:39]")
    A(f"v_cndmask_b32 v{vInc}, 0, v{vInc}, s[38:39]")
    for r in range(4):
        A(f"v_mov_b32 v{VF+12+r}, 0")
    for r in range(32):
        A(f"v_mov_b32 v{O+r}, 0")
    A("s_mov_b32 s40, 0")
    pf.setup(A, vPf, vL)
    A.stamp()
    A("s_waitcnt vmcnt(0) lgkmcnt(0)")
    A("s_barrier")
    A.stamp()

    def rdK(t):
        A(f"ds_read_b128 {v(KF,4)}, v{vK} offset:{t*1024}")
    def rdV(t, buf):
        for u in range(2):
            for rd in range(2):
                A(f"ds_read_b64_tr_b16 {v(VF+buf*8+u*4+rd*2,2)}, v{vV} offset:{t*1024+u*256+rd*128}")
    def ex(r):
        A(f"v_exp_f32 v{r}, v{r}")
    def mm(d, a_, b_, c_):
        A(f"v_mfma_f32_32x32x16_bf16 {v(d,16)}, {v(a_,4)}, {v(b_,4)}, {c_}")
    rdK(0)
    rdV(0, 0)
    for c in range(2, 8, 2):
        A(f"s_add_u32 m0, s32, {c*2048}")
        A(f"s_add_u32 s30, s29, {c*2048}")
        A(f"buffer_load_dwordx4 v{vD}, s[20:23], s30 offen lds")
        A(f"buffer_load_dwordx4 v{vD}, s[20:23], s30 offen offset:2048 lds")
    A("s_waitcnt lgkmcnt(4)")
    mm(S, KF, QF, "0")
    A("s_nop 7")
    A("s_nop 1")
    A.raw(".p2align 6")
    A.label(f"{NAME}_loop")
    for kt in range(2):
        vb = kt
        for b in range(2):
            Sb = S + 16*b
            Oc, Op = O + 16*b, O + 16*(b ^ 1)
            if b == 1: A("s_waitcnt lgkmcnt(4)")
            mm(S + 16*(b ^ 1), KF, QF + 4*(b ^ 1), "0")
            if b == 0: rdK(kt + 1)
            for r in range(6): ex(Sb + r)
            pvb = vb if b == 1 else vb ^ 1
            mm(Op, VF + pvb*8 + 4, P + 4, v(Op, 16))
            if b == 0: rdV(kt + 1, vb ^ 1)
            ex(Sb + 6); ex(Sb + 7)
            for r in range(4):
                A(f"v_cvt_pk_bf16_f32 v{P+r}, v{Sb+2*r}, v{Sb+2*r+1}")
            for r in range(8, 11): ex(Sb + r)
            if b == 0: A("s_waitcnt lgkmcnt(5)")
            mm(Oc, VF + vb*8, P, v(Oc, 16))
            for r in range(11, 16): ex(Sb + r)
            if kt == 1 and b == 1:
                A(f"v_add_u32 v{vK}, 2048, v{vK}")
                A(f"v_add_u32 v{vV}, v{vInc}, v{vV}")
            for r in range(4):
                A(f"v_cvt_pk_bf16_f32 v{P+4+r}, v{Sb+8+2*r}, v{Sb+8+2*r+1}")
    A("s_add_u32 s40, s40, 1")
    A("s_bitcmp1_b32 0xdc, s40")
    A(f"s_cbranch_scc1 {NAME}_loop")
    A("s_cmp_eq_u32 s40, 8")
    A(f"s_cbranch_scc1 {NAME}_done")
    A("s_cmp_eq_u32 s40, 5")
    A(f"s_cbranch_scc1 {NAME}_sync2")
    A("s_waitcnt vmcnt(2)")
    A("s_barrier")
    pf.early(A, vPf, vDum)
    A(f"s_branch {NAME}_loop")
    A.label(f"{NAME}_sync2")
    A("s_waitcnt vmcnt(0)")
    A("s_barrier")
    pf.late(A, vPf, vDum)
    A(f"s_branch {NAME}_loop")
    A.label(f"{NAME}_done")
    A.stamp()
    mm(O + 16, VF + 8 + 4, P + 4, v(O + 16, 16))
    A("s_mul_i32 s30, s33, 2304")
    A(f"v_add_u32 v{vTmp}, s30, v{vLo}")
    A(f"v_lshlrev_b32 v{vTmp2}, 2, v{vL}")
    A(f"v_add_u32 v{vTmp2}, s30, v{vTmp2}")
    A(f"v_add_u32 v{vK}, s42, v{vTmp}")
    A(f"v_add_u32 v{vV}, s42, v{vTmp2}")
    A("s_cmp_eq_u32 s34, 2")
    A(f"s_cbranch_scc1 {NAME}_now0")
    A(f"ds_write_b128 v{vK}, {v(O,4)}")
    A(f"ds_write_b128 v{vK}, {v(O+4,4)} offset:1024")
    A(f"ds_write_b32 v{vV}, v{O+8} offset:2048")
    A.label(f"{NAME}_now0")
    A(f"v_add_u32 v{vK}, 0x10000, v{vK}")
    A(f"v_add_u32 v{vV}, 0x10000, v{vV}")
    A("s_nop 7")
    A("s_cmp_eq_u32 s34, 3")
    A(f"s_cbranch_scc1 {NAME}_now1")
    A(f"ds_write_b128 v{vK}, {v(O+16,4)}")
    A(f"ds_write_b128 v{vK}, {v(O+20,4)} offset:1024")
    A(f"ds_write_b32 v{vV}, v{O+24} offset:2048")
    A(f"s_branch {NAME}_bar")
    A.label(f"{NAME}_now1")
    for r in range(9):
        A(f"v_mov_b32 v{O+r}, v{O+16+r}")
    for r in range(4):
        A(f"v_mov_b32 v{QF+r}, v{QF+4+r}")
    A(f"v_add_u32 v{vTmp}, 0x10000, v{vTmp}")
    A(f"v_add_u32 v{vTmp2}, 0x10000, v{vTmp2}")
    A("s_add_u32 s28, s28, 1024")
    A.label(f"{NAME}_bar")
    A("s_waitcnt lgkmcnt(0)")
    A.stamp()
    A("s_barrier")
    A.stamp()
    A("s_cmp_ge_u32 s34, 2")
    A(f"s_cbranch_scc1 {NAME}_comb")
    A.dump(1, 16, 24, keep=True)
    A("s_endpgm")
    A.label(f"{NAME}_comb")
    A("s_sub_u32 s30, 5, s34")
    A("s_lshl_b32 s30, s30, 14")
    A(f"v_add_u32 v{vK}, s30, v{vTmp}")
    A(f"v_add_u32 v{vV}, s30, v{vTmp2}")
    for i, (a1, a2, off) in enumerate([(vTmp, vTmp2, 0), (vTmp, vTmp2, 16384), (vK, vV, 0)]):
        d = S + 10*i
        A(f"ds_read_b128 {v(d,4)}, v{a1} offset:{off}")
        A(f"ds_read_b128 {v(d+4,4)}, v{a1} offset:{off+1024}")
        A(f"ds_read_b32 v{d+8}, v{a2} offset:{off+2048}")
    A(f"s_mov_b32 s44, {f32bits(2.0**-60):#x}")
    A(f"s_mov_b32 s45, {f32bits(2.0**60):#x}")
    A(f"s_mov_b32 s50, {f32bits(2.0**126):#x}")
    for i in range(3):
        d = S + 10*i
        A(f"s_waitcnt lgkmcnt({6-3*i})")
        for r in range(0, 8, 2):
            A(f"v_pk_add_f32 {v(O+r,2)}, {v(O+r,2)}, {v(d+r,2)}")
        A(f"v_add_f32 v{O+8}, v{O+8}, v{d+8}")
    A(f"v_max3_f32 v{vTmp}, |v{O}|, |v{O+1}|, |v{O+2}|")
    A(f"v_max3_f32 v{vTmp}, |v{O+3}|, |v{O+4}|, v{vTmp}")
    A(f"v_max3_f32 v{vTmp}, |v{O+5}|, |v{O+6}|, v{vTmp}")
    A(f"v_max_f32 v{vTmp}, |v{O+7}|, v{vTmp}")
    A(f"v_cmp_nge_f32 s[46:47], v{O+8}, s44")
    A(f"v_cmp_nle_f32 s[48:49], v{O+8}, s45")
    A(f"v_cmp_nle_f32 vcc, v{vTmp}, s50")
    A("s_or_b64 s[46:47], s[46:47], s[48:49]")
    A("s_or_b64 s[46:47], s[46:47], vcc")
    A("s_cmp_eq_u64 s[46:47], 0")
    A(f"s_cbranch_scc0 {NAME}_slow")
    A.label(f"{NAME}_fin")
    A(f"v_rcp_f32 v{vTmp}, v{O+8}")
    A(f"s_add_u32 s28, s28, {WS_O}")
    for r in range(8):
        A(f"v_mul_f32 v{O+r}, v{O+r}, v{vTmp}")
    for r in range(4):
        A(f"v_cvt_pk_bf16_f32 v{P+r}, v{O+2*r}, v{O+2*r+1}")
    A(f"buffer_store_dwordx4 {v(P,4)}, v{vLo}, s[20:23], s28 offen")
    A.dump(1, 16, 24)
    A("s_endpgm")
    A.label(f"{NAME}_slow")
    CB = S + 16
    A(f"v_mov_b32 v{vTmp}, 0xff800000")
    A(f"s_add_u32 s30, s27, {WS_K}")
    A("s_mov_b32 s40, 0")
    A.label(f"{NAME}_maxloop")
    A(f"buffer_load_dwordx4 {v(KF,4)}, v{vLo}, s[20:23], s30 offen")
    A("s_add_u32 s30, s30, 1024")
    A("s_waitcnt vmcnt(0)")
    mm(S, KF, QF, "0")
    A("s_add_u32 s40, s40, 1")
    A("s_nop 15")
    for r in range(8):
        A(f"v_max3_f32 v{vTmp}, v{S+2*r}, v{S+2*r+1}, v{vTmp}")
    A("s_cmp_lt_u32 s40, 64")
    A(f"s_cbranch_scc1 {NAME}_maxloop")
    A(f"v_mov_b32 v{vTmp2}, v{vTmp}")
    A("s_nop 1")
    A(f"v_permlane32_swap_b32 v{vTmp}, v{vTmp2}")
    A("s_nop 1")
    A(f"v_max_f32 v{vTmp}, v{vTmp}, v{vTmp2}")
    for r in range(16):
        A(f"v_sub_f32 v{CB+r}, 0, v{vTmp}")
        A(f"v_mov_b32 v{O+r}, 0")
    A("s_lshl_b32 s31, s24, 10")
    A(f"s_add_u32 s31, s31, {SCR}")
    A(f"v_add_u32 v{vV}, s31, v{vV0}")
    A(f"v_and_b32 v{vTmp}, 15, v{vL}")
    A(f"v_lshlrev_b32 v{vTmp}, 3, v{vTmp}")
    A(f"v_add_u32 v{vTmp}, {ONESB+128}, v{vTmp}")
    A(f"v_cndmask_b32 v{vV}, v{vTmp}, v{vV}, s[38:39]")
    A(f"v_lshrrev_b32 v{vTmp}, 5, v{vL}")
    A(f"v_lshlrev_b32 v{vTmp}, 6, v{vTmp}")
    A(f"v_xor_b32 v{vD}, v{vTmp}, v{vLo}")
    A("s_mov_b32 m0, s31")
    A(f"s_add_u32 s30, s27, {WS_K}")
    A("s_mov_b32 s40, 0")
    A.label(f"{NAME}_sloop")
    A(f"s_add_u32 s31, s30, {WS_V - WS_K}")
    A(f"buffer_load_dwordx4 {v(KF,4)}, v{vLo}, s[20:23], s30 offen")
    A(f"buffer_load_dwordx4 v{vD}, s[20:23], s31 offen lds")
    A("s_add_u32 s30, s30, 1024")
    A("s_waitcnt vmcnt(0)")
    mm(S, KF, QF, v(CB, 16))
    rdV(0, 0)
    A("s_add_u32 s40, s40, 1")
    A("s_nop 15")
    for r in range(16): ex(S + r)
    for r in range(8):
        A(f"v_cvt_pk_bf16_f32 v{P+r}, v{S+2*r}, v{S+2*r+1}")
    A("s_waitcnt lgkmcnt(0)")
    A("s_cmp_lt_u32 s40, 64")
    mm(O, VF, P, v(O, 16))
    mm(O, VF + 4, P + 4, v(O, 16))
    A(f"s_cbranch_scc1 {NAME}_sloop")
    A("s_nop 15")
    A(f"s_branch {NAME}_fin")
    A.label(f"{NAME}_end")
    A("s_endpgm")
    return dict(name=NAME, vgpr=NV, agpr=0, grid=256, block=1024, lds=LDS)
```

```python
from asmlib import *
from layout import *
BIG = 0x40000000
import os

def gen(A, which, prefetch=None):
    NAME = "oproj_kernel" if which == 3 else "down_kernel"
    NCH = 8 if which == 3 else 22
    NS = 8
    D = int(os.environ.get('K35D','4'))
    XB = NS * 16384
    LDS = XB + (8192 if which == 3 else 0)
    kernel_begin(A, NAME)
    vL, vLo, vWo, vTmp, vTmp2, vOut = 1, 2, 3, 4, 5, 6
    vAb, vWb, vAr, vWr = 8, 9, 10, 11
    vXr = [12, 13, 14, 15]
    RES = 16
    ACC = 24
    FR = 40
    NV = 104
    A("s_cmp_ge_u32 s2, 256")
    A(f"s_cbranch_scc1 {NAME}_end")
    A.stamp()
    if which == 3:
        A("s_load_dwordx2 s[4:5], s[0:1], 0")
        A("s_load_dwordx2 s[6:7], s[0:1], 16")
    else:
        A("s_load_dwordx4 s[4:7], s[0:1], 48")
    A("s_load_dwordx2 s[8:9], s[0:1], 72")
    A(f"v_lshrrev_b32 v{vTmp}, 6, v0")
    A(f"v_and_b32 v{vL}, 63, v0")
    A(f"v_readfirstlane_b32 s27, v{vTmp}")
    A(f"v_lshlrev_b32 v{vLo}, 4, v{vL}")
    A("s_and_b32 s3, s2, 7")
    A("s_lshr_b32 s10, s2, 3")
    A("s_and_b32 s11, s10, 3")
    A("s_lshl_b32 s25, s3, 2")
    A("s_add_u32 s25, s25, s11")
    A("s_lshr_b32 s26, s10, 2")
    A("s_and_b32 s24, s27, 3")
    A(f"s_mov_b32 s22, {WS_SIZE:#x}")
    A("s_mov_b32 s23, 0x20000")
    A(f"s_mov_b32 s14, {2048*1024:#x}")
    A("s_mov_b32 s15, 0x20000")
    A("s_cmp_lt_u32 s27, 4")
    A(f"s_cbranch_scc1 {NAME}_comp")
    A(f"v_lshrrev_b32 v{vTmp}, 3, v{vL}")
    A(f"v_lshlrev_b32 v{vWo}, 10, v{vTmp}")
    A(f"v_lshrrev_b32 v{vTmp}, 2, v{vL}")
    A(f"v_and_b32 v{vTmp}, 4, v{vTmp}")
    A(f"v_and_b32 v{vTmp2}, 7, v{vL}")
    A(f"v_xor_b32 v{vTmp}, v{vTmp}, v{vTmp2}")
    A(f"v_lshl_add_u32 v{vWo}, v{vTmp}, 4, v{vWo}")
    A(f"v_add_u32 v{vOut}, {8192-1024}, v{vWo}")
    if which == 3:
        ks_stride, tile_stride, abase = 65536, 1024, WS_O
        A("s_mov_b32 s40, s26")
        A(f"v_mov_b32 v{vAb}, v{vLo}")
    else:
        ks_stride, tile_stride, abase = 1024, HHKS*1024, WS_HH
        A("s_mul_i32 s40, s26, 11")
        A("s_lshr_b32 s40, s40, 2")
        A(f"v_add_u32 v{vAb}, {tile_stride-1024}, v{vLo}")
    A(f"s_mul_i32 s28, s25, {2*tile_stride}")
    A(f"s_mul_i32 s11, s24, {ks_stride}")
    A("s_add_u32 s28, s28, s11")
    A(f"s_add_u32 s28, s28, {abase}")
    A("s_lshl_b32 s29, s26, 7")
    A("s_lshl_b32 s11, s24, 14")
    A("s_add_u32 s29, s29, s11")
    A("s_lshl_b32 s32, s24, 11")
    A("s_mov_b32 s41, 0")
    A(f"s_mov_b32 s18, {(512 if which == 3 else 1376)*1024:#x}")
    A("s_mov_b32 s19, 0x20000")
    A("s_waitcnt lgkmcnt(0)")
    if which == 3:
        A("s_mov_b64 s[12:13], s[4:5]")
        A("s_mov_b64 s[16:17], s[6:7]")
    else:
        A("s_mov_b64 s[16:17], s[4:5]")
    A("s_mov_b64 s[20:21], s[8:9]")
    def issue(guard):
        A("s_and_b32 s42, s41, 7")
        A("s_lshl_b32 s42, s42, 14")
        A("s_add_u32 m0, s42, s32")
        A(f"s_mul_i32 s30, s40, {4*ks_stride}")
        A("s_add_u32 s30, s30, s28")
        A("s_lshl_b32 s31, s40, 16")
        A("s_add_u32 s31, s31, s29")
        if guard:
            A(f"s_cmp_lt_u32 s41, {NCH}")
            A(f"s_cselect_b32 s30, s30, {BIG:#x}")
            A(f"s_cselect_b32 s31, s31, {BIG:#x}")
        A(f"buffer_load_dwordx4 v{vLo}, s[20:23], s30 offen lds")
        A(f"buffer_load_dwordx4 v{vAb}, s[20:23], s30 offen offset:1024 lds")
        A("s_add_u32 m0, m0, 8192")
        A("s_add_u32 s40, s40, 1")
        A(f"buffer_load_dwordx4 v{vWo}, s[16:19], s31 offen lds")
        A(f"buffer_load_dwordx4 v{vOut}, s[16:19], s31 offen offset:1024 lds")
        A(f"s_cmp_eq_u32 s40, {NCH}")
        A("s_cselect_b32 s40, 0, s40")
        A("s_add_u32 s41, s41, 1")
    A.label(f"{NAME}_pro")
    issue(False)
    A(f"s_cmp_lt_u32 s41, {D}")
    A(f"s_cbranch_scc1 {NAME}_pro")
    extra = 0
    if which == 3:
        A(f"v_lshrrev_b32 v{vTmp}, 3, v{vL}")
        A(f"v_xor_b32 v{vTmp2}, v{vTmp}, v{vTmp2}")
        A(f"v_lshlrev_b32 v{vTmp}, 10, v{vTmp}")
        A(f"v_lshl_add_u32 v{vTmp}, v{vTmp2}, 4, v{vTmp}")
        A("s_lshl_b32 s36, s25, 16")
        A("s_add_u32 s36, s36, s29")
        for e in range(2):
            A(f"s_add_u32 m0, s32, {XB + e*1024}")
            A(f"s_add_u32 s43, s36, {e*8192}")
            A(f"buffer_load_dwordx4 v{vTmp}, s[12:15], s43 offen lds")
        extra = 2
    A("s_mov_b32 s46, 0")
    A.label(f"{NAME}_hloop")
    if extra:
        A(f"s_cmp_ge_u32 s46, {D}")
        A(f"s_cbranch_scc1 {NAME}_hw")
        A(f"s_waitcnt vmcnt({4*(D-1)+extra})")
        A(f"s_branch {NAME}_hb")
        A.label(f"{NAME}_hw")
    A(f"s_waitcnt vmcnt({4*(D-1)})")
    A.label(f"{NAME}_hb")
    A("s_barrier")
    issue(True)
    A("s_add_u32 s46, s46, 1")
    A(f"s_cmp_lt_u32 s46, {NCH}")
    A(f"s_cbranch_scc1 {NAME}_hloop")
    if prefetch: prefetch(A, vTmp, vTmp2, vL)
    A("s_endpgm")

    A.label(f"{NAME}_comp")
    A("s_and_b32 s34, s24, 1")
    A("s_lshr_b32 s35, s24, 1")
    A("s_lshl_b32 s33, s25, 1")
    A("s_add_u32 s33, s33, s34")
    A("s_lshl_b32 s38, s26, 2")
    A("s_lshl_b32 s37, s35, 1")
    A("s_add_u32 s38, s38, s37")
    A("s_lshl_b32 s38, s38, 10")
    A("s_lshl_b32 s37, s33, 15")
    A("s_add_u32 s38, s38, s37")
    A(f"s_add_u32 s38, s38, {WS_H}")
    A("s_waitcnt lgkmcnt(0)")
    A("s_mov_b64 s[20:21], s[8:9]")
    if which == 5:
        A("s_mov_b64 s[12:13], s[6:7]")
        for e in range(2):
            A(f"buffer_load_dwordx4 {v(RES+4*e,4)}, v{vLo}, s[20:23], s38 offen offset:{e*1024}")
    A(f"v_and_b32 v{vTmp}, 31, v{vL}")
    A(f"v_lshrrev_b32 v{vTmp2}, 5, v{vL}")
    if which == 5:
        A(f"v_lshlrev_b32 v{vOut}, 10, v{vTmp}")
        A(f"v_lshl_add_u32 v{vOut}, v{vTmp2}, 4, v{vOut}")
        A("s_lshl_b32 s36, s33, 15")
        A("s_lshl_b32 s37, s26, 7")
        A("s_add_u32 s36, s36, s37")
        A("s_lshl_b32 s37, s35, 6")
        A("s_add_u32 s36, s36, s37")
    else:
        A(f"v_lshlrev_b32 v{vXr[0]}, 7, v{vTmp}")
        A(f"v_lshl_add_u32 v{vXr[0]}, v{vTmp2}, 3, v{vXr[0]}")
        A(f"v_and_b32 v{vOut}, 7, v{vL}")
        A("s_lshl_b32 s37, s35, 2")
        A(f"v_xor_b32 v{vOut}, s37, v{vOut}")
        A(f"v_lshl_add_u32 v{vXr[0]}, v{vOut}, 4, v{vXr[0]}")
        A("s_lshl_b32 s37, s34, 12")
        A(f"s_add_u32 s37, s37, {XB}")
        A(f"v_add_u32 v{vXr[0]}, s37, v{vXr[0]}")
        for g in range(1, 4):
            A(f"v_xor_b32 v{vXr[g]}, {g*16}, v{vXr[0]}")
        A(f"v_lshlrev_b32 v{vOut}, 3, v{vTmp}")
        A("s_lshl_b32 s37, s33, 12")
        A("s_lshl_b32 s39, s26, 9")
        A("s_add_u32 s37, s37, s39")
        A("s_lshl_b32 s39, s35, 8")
        A("s_add_u32 s37, s37, s39")
        A(f"s_add_u32 s44, s37, {WS_ST}")
    A("s_lshl_b32 s37, s34, 10")
    A(f"v_add_u32 v{vAb}, s37, v{vLo}")
    A(f"v_bfe_u32 v{vTmp}, v{vL}, 2, 2")
    A(f"v_lshl_add_u32 v{vTmp2}, v{vTmp2}, 2, v{vTmp}")
    A(f"v_lshlrev_b32 v{vWb}, 7, v{vTmp2}")
    A(f"v_lshrrev_b32 v{vTmp}, 1, v{vTmp}")
    A(f"v_xor_b32 v{vTmp}, s35, v{vTmp}")
    A(f"v_lshl_add_u32 v{vWb}, v{vTmp}, 6, v{vWb}")
    A(f"v_bfe_u32 v{vTmp}, v{vL}, 4, 1")
    A(f"v_lshl_add_u32 v{vWb}, v{vTmp}, 5, v{vWb}")
    A(f"v_and_b32 v{vTmp}, 3, v{vL}")
    A(f"v_lshl_add_u32 v{vWb}, v{vTmp}, 3, v{vWb}")
    A(f"v_add_u32 v{vWb}, 0x2000, v{vWb}")
    if os.environ.get("NOTOUCH") != "1":
        if which == 3:
            A(f"v_and_b32 v{vTmp}, 15, v{vL}")
            A(f"v_lshlrev_b32 v{vTmp}, 7, v{vTmp}")
            A(f"buffer_load_dword v7, v{vTmp}, s[20:23], s38 offen")
            A(f"v_and_b32 v{vTmp}, 128, v{vTmp}")
            A(f"buffer_load_dword v7, v{vTmp}, s[20:23], s44 offen")
        else:
            A(f"buffer_load_dword v7, v{vOut}, s[12:15], s36 offen")
    for r in range(16):
        A(f"v_mov_b32 v{ACC+r}, 0")
    for r in range(32):
        A(f"v_mov_b32 v{FR+32+r}, 0")
    A("s_mov_b32 s45, 0")
    A("s_mov_b32 s46, 0")
    A.stamp()
    def rd(k, buf, so):
        d = FR + buf*32 + k*8
        return [f"ds_read_b128 {v(d,4)}, v{vAr} offset:{so + k*2048}",
                f"ds_read_b64_tr_b16 {v(d+4,2)}, v{vWr} offset:{so + k*2048}",
                f"ds_read_b64_tr_b16 {v(d+6,2)}, v{vWr} offset:{so + k*2048 + 1024}"]
    def mf(k, buf):
        d = FR + buf*32 + k*8
        A(f"v_mfma_f32_32x32x16_bf16 {v(ACC,16)}, {v(d+4,4)}, {v(d,4)}, {v(ACC,16)}")
    def half(buf, so):
        A("s_waitcnt lgkmcnt(0)")
        A("s_barrier")
        for k in range(4):
            for op in rd(k, buf, so): A(op)
            mf(k, buf ^ 1)
    A.raw(".p2align 6")
    A.label(f"{NAME}_loop")
    A(f"v_add_u32 v{vAr}, s45, v{vAb}")
    A(f"v_add_u32 v{vWr}, s45, v{vWb}")
    half(0, 0)
    A("s_add_u32 s45, s45, 32768")
    A("s_and_b32 s45, s45, 0x1ffff")
    A("s_add_u32 s46, s46, 2")
    A(f"s_cmp_lt_u32 s46, {NCH}")
    half(1, 16384)
    A(f"s_cbranch_scc1 {NAME}_loop")
    A.stamp()
    T = FR
    if which == 3:
        for g in range(4):
            A(f"ds_read_b64 {v(RES+2*g,2)}, v{vXr[g]}")
    for k in range(4):
        A(f"s_waitcnt lgkmcnt({9 - 3*k + (4 if which == 3 else 0)})")
        mf(k, 1)
    A("s_waitcnt vmcnt(0) lgkmcnt(0)")
    for i in range(8):
        A(f"v_lshlrev_b32 v{T+2*i}, 16, v{RES+i}")
        A(f"v_and_b32 v{T+2*i+1}, 0xffff0000, v{RES+i}")
    for r in range(0, 16, 2):
        A(f"v_pk_add_f32 {v(T+r,2)}, {v(T+r,2)}, {v(ACC+r,2)}")
    for i in range(8):
        A(f"v_cvt_pk_bf16_f32 v{RES+i}, v{T+2*i}, v{T+2*i+1}")
    if which == 3:
        for e in range(2):
            A(f"buffer_store_dwordx4 {v(RES+4*e,4)}, v{vLo}, s[20:23], s38 offen offset:{e*1024}")
        for i in range(8):
            A(f"v_lshlrev_b32 v{T+2*i}, 16, v{RES+i}")
            A(f"v_and_b32 v{T+2*i+1}, 0xffff0000, v{RES+i}")
        s1, s2 = T+16, T+18
        A(f"v_pk_add_f32 {v(s1,2)}, {v(T,2)}, {v(T+2,2)}")
        A(f"v_pk_mul_f32 {v(s2,2)}, {v(T,2)}, {v(T,2)}")
        A(f"v_pk_fma_f32 {v(s2,2)}, {v(T+2,2)}, {v(T+2,2)}, {v(s2,2)}")
        for r in range(4, 16, 2):
            A(f"v_pk_add_f32 {v(s1,2)}, {v(s1,2)}, {v(T+r,2)}")
            A(f"v_pk_fma_f32 {v(s2,2)}, {v(T+r,2)}, {v(T+r,2)}, {v(s2,2)}")
        A(f"v_add_f32 v{s1}, v{s1}, v{s1+1}")
        A(f"v_add_f32 v{s1+1}, v{s2}, v{s2+1}")
        A(f"v_mov_b32 v{s2}, v{s1}")
        A(f"v_mov_b32 v{s2+1}, v{s1+1}")
        A("s_nop 1")
        A(f"v_permlane32_swap_b32 v{s1}, v{s2}")
        A(f"v_permlane32_swap_b32 v{s1+1}, v{s2+1}")
        A("s_nop 1")
        A(f"v_pk_add_f32 {v(s1,2)}, {v(s1,2)}, {v(s2,2)}")
        A("s_mov_b32 exec_hi, 0")
        A(f"buffer_store_dwordx2 {v(s1,2)}, v{vOut}, s[20:23], s44 offen")
    else:
        A("s_nop 1")
        for e in range(2):
            A(f"v_permlane32_swap_b32 v{RES+4*e}, v{RES+4*e+2}")
            A(f"v_permlane32_swap_b32 v{RES+4*e+1}, v{RES+4*e+3}")
        for e in range(2):
            A(f"buffer_store_dwordx4 {v(RES+4*e,4)}, v{vOut}, s[12:15], s36 offen offset:{e*32}")
    A.dump(2 if which == 3 else 4, 4, 24)
    A.label(f"{NAME}_end")
    A("s_endpgm")
    return dict(name=NAME, vgpr=NV, agpr=0, grid=256, block=512, lds=LDS)
```

```python
from asmlib import *
from layout import *
import math, os

NAME = "glu_kernel"
SLOT = 40960
NS = 3
LDS = NS * SLOT
BIG = 0x40000000

def gen(A, prefetch=None):
    kernel_begin(A, NAME)
    vL, vLo, vWd, vTmp, vTmp2 = 1, 2, 3, 4, 5
    vXb, vWb, vXr, vWr = 6, 7, 8, 9
    vMu, vRs = 10, 11
    K1 = 12
    ST = 24
    FR = 40
    ACC = 96
    XR, XN = 40, 72
    NV = 192
    A("s_cmp_ge_u32 s2, 256")
    A(f"s_cbranch_scc1 {NAME}_end")
    A("s_lshr_b32 s10, s2, 3")
    A("s_lshr_b32 s26, s10, 1")
    A("s_cmp_ge_u32 s26, 15")
    A(f"s_cbranch_scc1 {NAME}_end")
    A.stamp()
    A("s_load_dwordx4 s[4:7], s[0:1], 32")
    A("s_load_dwordx2 s[8:9], s[0:1], 72")
    A(f"v_lshrrev_b32 v{vTmp}, 6, v0")
    A(f"v_and_b32 v{vL}, 63, v0")
    A(f"v_readfirstlane_b32 s27, v{vTmp}")
    A(f"v_lshlrev_b32 v{vLo}, 4, v{vL}")
    A("s_and_b32 s3, s2, 7")
    A("s_lshl_b32 s25, s3, 1")
    A("s_and_b32 s11, s10, 1")
    A("s_add_u32 s25, s25, s11")
    A("s_and_b32 s24, s27, 3")
    A("s_lshl_b32 s33, s25, 2")
    A("s_add_u32 s33, s33, s24")
    A("s_lshl_b32 s34, s24, 12")
    A(f"v_add_u32 v{vXb}, s34, v{vLo}")
    A(f"s_mov_b32 s22, {WS_SIZE:#x}")
    A("s_mov_b32 s23, 0x20000")
    A("s_cmp_lt_u32 s27, 4")
    A(f"s_cbranch_scc1 {NAME}_comp")
    if os.environ.get("HPRIO"): A(f"s_setprio {os.environ['HPRIO']}")
    A("s_lshl_b32 s28, s33, 15")
    A(f"s_add_u32 s28, s28, {WS_H}")
    A("s_mul_i32 s29, s26, 192")
    A(f"s_mul_i32 s11, s24, {16*2752}")
    A("s_add_u32 s29, s29, s11")
    A("s_lshl_b32 s35, s24, 10")
    A("s_add_u32 s35, s35, 16384")
    A(f"v_lshrrev_b32 v{vTmp}, 2, v{vL}")
    A(f"v_mul_u32_u24 v{vWd}, 2752, v{vTmp}")
    A(f"v_and_b32 v{vTmp}, 3, v{vL}")
    A(f"v_lshl_add_u32 v{vWd}, v{vTmp}, 4, v{vWd}")
    A(f"v_and_b32 v{vTmp}, 31, v{vL}")
    A(f"v_lshlrev_b32 v{vTmp2}, 3, v{vTmp}")
    A(f"v_lshrrev_b32 v{vTmp}, 5, v{vL}")
    A(f"v_lshl_add_u32 v{vTmp2}, v{vTmp}, 11, v{vTmp2}")
    A("s_lshl_b32 s27, s33, 12")
    A(f"s_add_u32 s27, s27, {WS_ST}")
    A("s_mov_b32 s36, 0")
    A("s_mov_b32 s37, 0")
    A(f"s_mov_b32 s14, {512*2752:#x}")
    A("s_mov_b32 s15, 0x20000")
    A(f"s_mov_b32 s18, {512*2752:#x}")
    A("s_mov_b32 s19, 0x20000")
    A("s_waitcnt lgkmcnt(0)")
    A("s_mov_b64 s[20:21], s[8:9]")
    A("s_mov_b64 s[12:13], s[4:5]")
    A("s_mov_b64 s[16:17], s[6:7]")
    for e in range(8):
        A(f"buffer_load_dwordx2 {v(ST+2*e,2)}, v{vTmp2}, s[20:23], s27 offen offset:{e*256}")
    def issue(buf, fill=()):
        fill = list(fill)
        per = (len(fill) + 9) // 10
        def f():
            for _ in range(per):
                if fill: A(fill.pop(0))
        for op in ["s_add_u32 s30, s26, s36", "s_and_b32 s30, s30, 7", "s_lshl_b32 s31, s30, 12", "s_add_u32 s31, s31, s28",
                   f"s_mul_i32 s30, s30, {64*2752}", "s_add_u32 s30, s30, s29",
                   "s_add_u32 m0, s37, s35",
                   "s_cmp_lt_u32 s36, 8", f"s_cselect_b32 s30, s30, {BIG:#x}", f"s_cselect_b32 s31, s31, {BIG:#x}"]:
            A(op)
        for e in range(4):
            A(f"buffer_load_dwordx4 {v(XR+buf*16+e*4,4)}, v{vLo}, s[20:23], s31 offen offset:{e*1024}")
            f()
        A(f"s_add_u32 s37, s37, {SLOT}")
        A(f"s_cmp_eq_u32 s37, {NS*SLOT}")
        A("s_cselect_b32 s37, 0, s37")
        A("s_add_u32 s36, s36, 1")
        for blk in range(6):
            m, cbk = blk // 3, blk % 3
            A(f"buffer_load_dwordx4 v{vWd}, s[{12+4*m}:{15+4*m}], s30 offen offset:{cbk*64} lds")
            if blk < 5:
                A(f"s_add_u32 m0, m0, {4096-64 if cbk < 2 else 4096+128}")
                if not fill: A("s_nop 0")
            f()
        assert not fill
    def norm(buf):
        ops = []
        for e in range(4):
            t = ST + (e & 1) * 8
            for i in range(4):
                x = XR + buf*16 + e*4 + i
                ops.append(f"v_lshlrev_b32 v{t+2*i}, 16, v{x}")
                ops.append(f"v_and_b32 v{t+2*i+1}, 0xffff0000, v{x}")
            for i in range(8):
                ops.append(f"v_fma_f32 v{t+i}, v{t+i}, v{vRs}, v{vMu}")
            for i in range(4):
                ops.append(f"v_cvt_pk_bf16_f32 v{XN+e*4+i}, v{t+2*i}, v{t+2*i+1}")
            ops.append(f"ds_write_b128 v{vXr}, {v(XN+e*4,4)} offset:{e*1024}")
        return ops
    issue(0)
    A(f"s_mov_b32 s42, {f32bits(1.0/512):#x}")
    A(f"s_mov_b32 s43, {f32bits(1e-5):#x}")
    A("s_mov_b32 s40, 0")
    A("s_mov_b32 s41, 0")
    A("s_waitcnt vmcnt(10)")
    for e in range(1, 8):
        A(f"v_pk_add_f32 {v(ST,2)}, {v(ST,2)}, {v(ST+2*e,2)}")
    A(f"v_mov_b32 v{ST+2}, v{ST}")
    A(f"v_mov_b32 v{ST+3}, v{ST+1}")
    A("s_nop 1")
    A(f"v_permlane32_swap_b32 v{ST}, v{ST+2}")
    A(f"v_permlane32_swap_b32 v{ST+1}, v{ST+3}")
    A("s_nop 1")
    A(f"v_pk_add_f32 {v(ST,2)}, {v(ST,2)}, {v(ST+2,2)}")
    m, r, t0 = vMu, vRs, ST+4
    A(f"v_mul_f32 v{m}, s42, v{ST}")
    A(f"v_mul_f32 v{r}, s42, v{ST+1}")
    A(f"v_fma_f32 v{r}, -v{m}, v{m}, v{r}")
    A(f"v_max_f32 v{r}, 0, v{r}")
    A(f"v_cvt_pk_bf16_f32 v{t0}, v{m}, v{r}")
    A(f"v_lshlrev_b32 v{m}, 16, v{t0}")
    A(f"v_and_b32 v{r}, 0xffff0000, v{t0}")
    A(f"v_add_f32 v{r}, s43, v{r}")
    A(f"v_cvt_pk_bf16_f32 v{t0}, v{r}, v{r}")
    A(f"v_and_b32 v{r}, 0xffff0000, v{t0}")
    A(f"v_sqrt_f32 v{r}, v{r}")
    A(f"v_sub_f32 v{m}, 0, v{m}")
    A(f"v_cvt_pk_bf16_f32 v{t0}, v{r}, v{r}")
    A(f"v_and_b32 v{r}, 0xffff0000, v{t0}")
    A(f"v_rcp_f32 v{r}, v{r}")
    A("s_nop 0")
    A(f"v_mul_f32 v{m}, v{m}, v{r}")
    A.label(f"{NAME}_hloop")
    for par in range(2):
        A(f"v_add_u32 v{vXr}, s40, v{vXb}")
        A(f"s_add_u32 s40, s40, {SLOT}")
        A(f"s_cmp_eq_u32 s40, {NS*SLOT}")
        A("s_cselect_b32 s40, 0, s40")
        A("s_waitcnt vmcnt(6)")
        issue(par ^ 1, norm(par))
        if par == 1:
            A("s_add_u32 s41, s41, 1")
            A("s_cmp_lt_u32 s41, 4")
        A("s_waitcnt vmcnt(10) lgkmcnt(0)")
        A("s_barrier")
    A(f"s_cbranch_scc1 {NAME}_hloop")
    if prefetch: prefetch(A, vTmp, vTmp2, vL)
    A("s_endpgm")

    A.label(f"{NAME}_comp")
    A(f"v_bfe_u32 v{vTmp}, v{vL}, 2, 2")
    A(f"v_lshrrev_b32 v{vTmp2}, 5, v{vL}")
    A(f"v_lshl_add_u32 v{vTmp}, v{vTmp2}, 2, v{vTmp}")
    A(f"v_lshlrev_b32 v{vWb}, 6, v{vTmp}")
    A(f"v_bfe_u32 v{vTmp}, v{vL}, 4, 1")
    A(f"v_lshl_add_u32 v{vWb}, v{vTmp}, 5, v{vWb}")
    A(f"v_and_b32 v{vTmp}, 3, v{vL}")
    A(f"v_lshl_add_u32 v{vWb}, v{vTmp}, 3, v{vWb}")
    A(f"v_add_u32 v{vWb}, 16384, v{vWb}")
    A(f"v_mov_b32 v{vXr}, v{vXb}")
    A(f"v_mov_b32 v{vWr}, v{vWb}")
    for r in range(96):
        A(f"v_mov_b32 v{ACC+r}, 0")
    A(f"s_mul_i32 s34, s33, {HHKS}")
    A("s_mul_i32 s35, s26, 6")
    A("s_add_u32 s34, s34, s35")
    A("s_lshl_b32 s34, s34, 10")
    A(f"s_add_u32 s34, s34, {WS_HH}")
    A(f"v_mov_b32 v{K1}, {f32bits(-math.log2(math.e)):#x}")
    A(f"v_mov_b32 v{K1+1}, 1.0")
    A("s_mov_b32 s40, 0")
    A("s_mov_b32 s41, 0")
    A("s_waitcnt lgkmcnt(0)")
    A("s_mov_b64 s[20:21], s[8:9]")
    A.stamp()
    A("s_barrier")
    A.stamp()
    def read_ops(k, buf):
        d = FR + buf*28
        ops = [f"ds_read_b128 {v(d,4)}, v{vXr} offset:{k*1024}"]
        for blk in range(6):
            for rd in range(2):
                ops.append(f"ds_read_b64_tr_b16 {v(d+4+blk*4+rd*2,2)}, v{vWr} offset:{blk*4096 + k*1024 + rd*512}")
        return ops
    def kstep(k, extra=None, reads=True, order=range(6)):
        b = k & 1
        d = FR + b*28
        rd = read_ops((k + 1) & 3, b ^ 1) if reads else []
        fill = [rd[0:3], rd[3:6], rd[6:9], rd[9:13], [], []]
        A("s_waitcnt lgkmcnt(0)")
        for i, blk in enumerate(order):
            acc = v(ACC + blk*16, 16)
            A(f"v_mfma_f32_32x32x16_bf16 {acc}, {v(d+4+blk*4,4)}, {v(d,4)}, {acc}")
            if extra and i in extra:
                for op in extra[i]: A(op)
            for op in fill[i]: A(op)
    for op in read_ops(0, 0): A(op)
    A.raw(".p2align 6")
    A.label(f"{NAME}_loop")
    kstep(0)
    kstep(1)
    kstep(2, {4: [f"s_add_u32 s40, s40, {SLOT}", f"s_cmp_eq_u32 s40, {NS*SLOT}", "s_cselect_b32 s40, 0, s40", "s_add_u32 s41, s41, 1"],
              5: [f"v_add_u32 v{vXr}, s40, v{vXb}", f"v_add_u32 v{vWr}, s40, v{vWb}", "s_cmp_eq_u32 s41, 8"]})
    A(f"s_cbranch_scc1 {NAME}_epi")
    kstep(3, {0: ["s_barrier"]})
    A(f"s_branch {NAME}_loop")
    A.label(f"{NAME}_epi")
    A.stamp()
    kstep(3, reads=False, order=[0, 3, 1, 4, 2, 5])
    A("s_nop 6")
    for cbk in range(3):
        G, U = ACC + cbk*16, ACC + (3+cbk)*16
        if cbk == 1:
            A("s_cmp_eq_u32 s26, 14")
            A(f"s_cbranch_scc1 {NAME}_tail")
        for i in range(0, 16, 2):
            A(f"v_pk_mul_f32 {v(G+i,2)}, {v(G+i,2)}, {v(K1,2)} op_sel_hi:[1,0]")
        for r_ in range(16): A(f"v_exp_f32 v{G+r_}, v{G+r_}")
        for i in range(0, 16, 2):
            A(f"v_pk_add_f32 {v(G+i,2)}, {v(G+i,2)}, {v(K1,2)} op_sel:[0,1]")
        for r_ in range(16): A(f"v_rcp_f32 v{G+r_}, v{G+r_}")
        for i in range(0, 16, 2):
            A(f"v_pk_mul_f32 {v(G+i,2)}, {v(G+i,2)}, {v(U+i,2)}")
        for i in range(8): A(f"v_cvt_pk_bf16_f32 v{U+i}, v{G+2*i}, v{G+2*i+1}")
        for e in range(2):
            A(f"buffer_store_dwordx4 {v(U+4*e,4)}, v{vLo}, s[20:23], s34 offen offset:{e*1024}")
        A("s_add_u32 s34, s34, 2048")
    A.dump(3, 4, 24, keep=True)
    A("s_endpgm")
    A.label(f"{NAME}_tail")
    for r_ in range(4): A(f"v_mov_b32 v{ST+r_}, 0")
    for e in range(2):
        A(f"buffer_store_dwordx4 {v(ST,4)}, v{vLo}, s[20:23], s34 offen offset:{e*1024}")
    A.nst = 0
    A.label(f"{NAME}_end")
    A("s_endpgm")
    return dict(name=NAME, vgpr=NV, agpr=0, grid=256, block=512, lds=LDS)
```

```python
import sys, os
sys.path.insert(0, os.path.dirname(__file__))
from asmlib import *
os.environ.setdefault('NOTOUCH','1'); os.environ.setdefault('NOTOUCH1','1')
import k1, k2, k35, k4
HEAD = open("sequential_preLN__mha_block__glu_gated_glu__prompt.s.ref").read().split("; Override launch")[0]
def code_prefetch(A, vT, vD, vL, tag):
    A("s_getpc_b64 s[50:51]")
    A.label(f"pc_{tag}")
    A(f"s_sub_u32 s50, s50, pc_{tag}-qkv_kernel")
    A("s_subb_u32 s51, s51, 0")
    A(f"v_lshlrev_b32 v{vT}, 7, v{vL}")
    A(f"global_load_dword v{vD}, v{vT}, s[50:51]")
    A(f"v_add_u32 v{vT}, 8192, v{vT}")
    A(f"v_min_u32 v{vT}, code_end-qkv_kernel-4, v{vT}")
    A(f"global_load_dword v{vD}, v{vT}, s[50:51]")

BIG = 0x40000000
class AttnPF:
    def loads(self, A):
        A("s_load_dwordx2 s[56:57], s[0:1], 16")
        A("s_load_dwordx8 s[44:51], s[0:1], 32")
    def setup(self, A, vT, vL):
        from layout import WS_HH, WS_H, HHKS, WS_SIZE
        A("s_lshr_b32 s58, s2, 3")
        A("s_lshl_b32 s58, s58, 4")
        A("s_add_u32 s58, s58, s24")
        A("s_and_b32 s59, s2, 7")
        A(f"v_lshlrev_b32 v{vT}, 7, v{vL}")
        A("s_mov_b32 s55, 0x20000")
        A("s_mov_b32 s60, s58")
        A("s_mov_b64 s[52:53], s[56:57]")
        A(f"s_mov_b32 s54, {512*1024}")
        A("s_cmp_lt_u32 s60, 64")
        A("s_cbranch_scc1 pf_go")
        A("s_sub_u32 s60, s60, 64")
        A("s_mov_b64 s[52:53], s[44:45]")
        A(f"s_mov_b32 s54, {512*2752}")
        A("s_cmp_lt_u32 s60, 172")
        A("s_cbranch_scc1 pf_go")
        A("s_sub_u32 s60, s60, 172")
        A("s_mov_b64 s[52:53], s[46:47]")
        A.label("pf_go")
        A("s_lshl_b32 s60, s60, 13")
        A("s_mov_b32 s15, 0x20000")
        A("s_mov_b32 s57, 0")
        A("s_mov_b64 s[12:13], s[48:49]")
        A(f"s_mov_b32 s14, {1376*1024}")
        A("s_cmp_lt_u32 s58, 172")
        A("s_cbranch_scc1 pf0_go")
        A("s_sub_u32 s58, s58, 172")
        A("s_mov_b64 s[12:13], s[50:51]")
        A(f"s_mov_b32 s14, {2048*1024}")
        A("s_lshl_b32 s57, s59, 18")
        A("s_cmp_lt_u32 s58, 32")
        A("s_cbranch_scc1 pf0_go")
        A("s_sub_u32 s58, s58, 32")
        A("s_mov_b64 s[12:13], s[8:9]")
        A(f"s_mov_b32 s14, {WS_SIZE}")
        A(f"s_add_u32 s57, s57, {WS_H}")
        A("s_cmp_lt_u32 s58, 32")
        A("s_cbranch_scc1 pf0_go")
        A("s_sub_u32 s58, s58, 32")
        A(f"s_mul_i32 s57, s59, {8*HHKS*1024}")
        A(f"s_add_u32 s57, s57, {WS_HH}")
        A("s_cmp_lt_u32 s58, 88")
        A(f"s_cselect_b32 s57, s57, {BIG:#x}")
        A.label("pf0_go")
        A("s_lshl_b32 s61, s58, 13")
        A("s_add_u32 s61, s61, s57")
    def early(self, A, vT, vD):
        if os.environ.get("NOPF0") != "1":
            A(f"buffer_load_dword v{vD}, v{vT}, s[12:15], s61 offen")
    def late(self, A, vT, vD):
        if os.environ.get("NOPF") != "1":
            A(f"buffer_load_dword v{vD}, v{vT}, s[52:55], s60 offen")

def build(out):
    A = Asm()
    A.diag = os.environ.get('DIAG','0')=='1'
    ks = []
    ks.append(k1.gen(A, code_prefetch))
    ks.append(k2.gen(A, AttnPF()))
    ks.append(k35.gen(A, 3))
    ks.append(k4.gen(A))
    ks.append(k35.gen(A, 5))
    A.label('code_end')
    txt = HEAD
    order = os.environ.get("ORDER")
    lk = [ks[int(c)] for c in order] if order else ks
    for k in lk:
        txt += f"; @launch kernel={k['name']} grid=({k['grid']},1,1) block=({k['block']},1,1) lds={k['lds']}\n"
    txt += '.amdgcn_target "amdgcn-amd-amdhsa--gfx950"\n.text\n'
    txt += A.text()
    txt += '.section .rodata,"a"\n'
    for k in ks:
        txt += descriptor(k['name'], k['vgpr'], k['agpr'])
    open(out, "w").write(txt)
if __name__ == "__main__":
    build(sys.argv[1] if len(sys.argv) > 1 else "sequential_preLN__mha_block__glu_gated_glu__prompt.s")
```

```python
class Asm:
    def __init__(self):
        self.lines = []
    def __call__(self, s, *a):
        for ln in s.strip("\n").split("\n"):
            if self.drop and any(ln.strip().startswith(d) for d in self.drop): continue
            self.lines.append("    " + ln.strip() if not ln.strip().endswith(":") else ln.strip())
    def label(self, n):
        self.lines.append(f"{n}:")
    def raw(self, s):
        self.lines.append(s)
    def comment(self, s):
        self.lines.append(f"    ; {s}")
    diag = False
    import os as _os
    drop = [d for d in _os.environ.get('DROP','').split(',') if d]
    nst = 0
    def stamp(self):
        if not self.diag: return
        i = self.nst; self.nst += 1
        assert i < 14
        self(f"s_memtime s[{70+2*i}:{71+2*i}]") if i else self(f"s_memrealtime s[70:71]\ns_memtime s[72:73]")
        if i == 0: self.nst = 2
    def dump(self, kidx, nwaves, wave_sgpr, srd=20, keep=False):
        if not self.diag: return
        i = self.nst
        self(f"s_memtime s[{70+2*i}:{71+2*i}]")
        self(f"s_memrealtime s[{72+2*i}:{73+2*i}]")
        n = i + 2
        self("s_waitcnt lgkmcnt(0)")
        self("s_mov_b64 exec, 1")
        self(f"s_mul_i32 s68, s2, {nwaves}")
        self(f"s_add_u32 s68, s68, s{wave_sgpr}")
        self("s_lshl_b32 s68, s68, 7")
        self(f"s_add_u32 s68, s68, {(20<<20) + kidx*(1<<19)}")
        self("v_mov_b32 v0, 0")
        for k in range(n):
            self(f"v_mov_b32 v2, s{70+2*k}")
            self(f"v_mov_b32 v3, s{71+2*k}")
            self(f"buffer_store_dwordx2 v[2:3], v0, s[{srd}:{srd+3}], s68 offen offset:{8*k}")
            self("s_nop 1")
        self(f"v_mov_b32 v2, {n}")
        self(f"buffer_store_dword v2, v0, s[{srd}:{srd+3}], s68 offen offset:124")
        if not keep: self.nst = 0
    def text(self):
        return "\n".join(self.lines) + "\n"

def v(i, n=1):
    return f"v{i}" if n == 1 else f"v[{i}:{i+n-1}]"
def a(i, n=1):
    return f"a{i}" if n == 1 else f"a[{i}:{i+n-1}]"
def s(i, n=1):
    return f"s{i}" if n == 1 else f"s[{i}:{i+n-1}]"

def srd(A, d, ptr, nbytes, add=0):
    if add:
        A(f"s_add_u32 s{d}, s{ptr}, {add:#x}")
        A(f"s_addc_u32 s{d+1}, s{ptr+1}, 0")
    else:
        A(f"s_mov_b32 s{d}, s{ptr}")
        A(f"s_mov_b32 s{d+1}, s{ptr+1}")
    A(f"s_mov_b32 s{d+2}, {nbytes:#x}")
    A(f"s_mov_b32 s{d+3}, 0x20000")

def kernel_begin(A, name):
    A.raw(f".globl {name}")
    A.raw(".p2align 8")
    A.raw(f".type {name},@function")
    A.label(name)

def descriptor(name, vgpr, agpr=0, sgpr=102):
    acc = (vgpr + 3) // 4 * 4
    nfv = acc + agpr if agpr else vgpr
    return f""".p2align 6
.amdhsa_kernel {name}
  .amdhsa_next_free_vgpr {nfv}
  .amdhsa_next_free_sgpr {sgpr}
  .amdhsa_accum_offset {acc}
  .amdhsa_group_segment_fixed_size 0
  .amdhsa_kernarg_size 80
  .amdhsa_user_sgpr_count 2
  .amdhsa_user_sgpr_kernarg_segment_ptr 1
  .amdhsa_system_sgpr_workgroup_id_x 1
  .amdhsa_float_denorm_mode_32 3
  .amdhsa_float_denorm_mode_16_64 3
.end_amdhsa_kernel
"""
```

```python
from asmlib import *
from layout import *
import math, os

NAME = "tail_kernel"
BIG = 0x40000000
K = 1024
ONESB, CMB = 128*K, 138*K
LDS = 160*K
SPIN = 200000

vL, vLo, vTmp, vTmp2 = 6, 1, 7, 5
RES = 216
NV = 256

def store2(A, tag, ops):
    A("s_cmp_lg_u32 s36, 0")
    A(f"s_cbranch_scc1 {NAME}_{tag}_d")
    for op in ops: A(op.format(f=""))
    A(f"s_branch {NAME}_{tag}_e")
    A.label(f"{NAME}_{tag}_d")
    for op in ops: A(op.format(f=" sc0 sc1"))
    A.label(f"{NAME}_{tag}_e")

def signal(A, phase, tag):
    A("s_lshl_b32 s40, s35, 2")
    A("s_add_u32 s40, s40, s33")
    A("s_lshl_b32 s40, s40, 2")
    A("s_add_u32 s40, s40, s37")
    A(f"v_mov_b32 v{vTmp}, 0")
    A(f"v_mov_b32 v{vTmp2}, 1")
    A("s_mov_b64 exec, 1")
    A("s_waitcnt vmcnt(0)")
    store2(A, tag, [f"buffer_store_dword v{vTmp2}, v{vTmp}, s[20:23], s40 offen offset:{512*phase}{{f}}"])
    A("s_mov_b64 exec, -1")

def wait_flags(A, phase, tag, d):
    A(f"v_lshlrev_b32 v{vTmp}, 3, v{vL}")
    A("s_mov_b32 s40, 0")
    A.label(f"{NAME}_{tag}")
    A(f"buffer_load_dwordx2 {v(d,2)}, v{vTmp}, s[20:23], s37 offen offset:{512*phase} sc1")
    A("s_add_u32 s40, s40, 1")
    A(f"s_cmp_gt_u32 s40, {SPIN}")
    A(f"s_cbranch_scc1 {NAME}_{tag}_x")
    A("s_waitcnt vmcnt(0)")
    A(f"v_and_b32 v{d}, v{d}, v{d+1}")
    A(f"v_cmp_eq_u32 vcc, 0, v{d}")
    A(f"s_cbranch_vccnz {NAME}_{tag}")
    A.label(f"{NAME}_{tag}_x")

def mm(A, d, a_, b_, c_):
    A(f"v_mfma_f32_32x32x16_bf16 {v(d,16)}, {v(a_,4)}, {v(b_,4)}, {c_}")

def w128_voff(A, d):
    A(f"v_lshrrev_b32 v{vTmp}, 3, v{vL}")
    A(f"v_lshlrev_b32 v{d}, 10, v{vTmp}")
    A(f"v_lshrrev_b32 v{vTmp}, 2, v{vL}")
    A(f"v_and_b32 v{vTmp}, 4, v{vTmp}")
    A(f"v_and_b32 v{vTmp2}, 7, v{vL}")
    A(f"v_xor_b32 v{vTmp}, v{vTmp}, v{vTmp2}")
    A(f"v_lshl_add_u32 v{d}, v{vTmp}, 4, v{d}")

def attention(A):
    vK, vV, vInc = 2, 3, 4
    QF, KF, VF, P, S, O = 8, 16, 20, 36, 44, 76
    vD, vDum, vV0, vPf, vWo, vX, vId, vW4 = 108, 109, 110, 111, 112, 113, 114, 115
    A("s_lshl_b32 s41, s35, 16")
    A("s_lshr_b32 s42, s32, 2")
    A("s_lshl_b32 s43, s42, 15")
    A("s_and_b32 s44, s32, 1")
    A("s_bfe_u32 s45, s32, 0x10001")
    A("s_lshl_b32 s45, s45, 10")
    A("s_add_u32 s45, s45, s43")
    A("s_bfe_u32 s46, s32, 0x10001")
    A("s_lshl_b32 s46, s46, 12")
    A("s_lshl_b32 s40, s44, 11")
    A("s_add_u32 s46, s46, s40")
    A("s_lshl_b32 s57, s42, 10")
    A("s_add_u32 s46, s46, s57")
    A("s_lshl_b32 s47, s44, 21")
    A("s_add_u32 s47, s47, s45")
    A("s_add_u32 s47, s47, s41")
    A(f"s_add_u32 s47, s47, {WS_K}")
    A("s_lshl_b32 s48, s34, 2")
    A("s_add_u32 s48, s48, s33")
    A("s_lshl_b32 s48, s48, 11")
    A("s_add_u32 s48, s48, s41")
    A(f"v_lshrrev_b32 v{vTmp2}, 5, v{vL}")
    A(f"v_mul_u32_u24 v{vTmp}, s44, v{vTmp2}")
    A(f"v_lshlrev_b32 v{vTmp}, 6, v{vTmp}")
    A(f"v_xor_b32 v{vD}, v{vTmp}, v{vLo}")
    A("s_mov_b32 m0, s46")
    A("s_waitcnt lgkmcnt(0)")
    def kv(n):
        for i in range(n):
            A(f"buffer_load_dwordx4 v{vD}, s[20:23], s47 offen lds")
            A("s_add_u32 m0, m0, 8192")
            A("s_add_u32 s47, s47, 2048")
    kv(1)
    A(f"buffer_load_dwordx4 {v(QF,4)}, v{vLo}, s[20:23], s48 offen")
    A(f"buffer_load_dwordx4 {v(QF+4,4)}, v{vLo}, s[20:23], s48 offen offset:1024")
    kv(2)
    A("s_getreg_b32 s38, hwreg(HW_REG_XCC_ID, 0, 4)")
    A("s_add_u32 s38, s38, 1")
    A("s_cmp_lg_u32 s32, 0")
    A(f"s_cbranch_scc1 {NAME}_noid")
    A("s_lshl_b32 s40, s35, 2")
    A("s_add_u32 s40, s40, s37")
    A(f"v_mov_b32 v{vK}, 0")
    A(f"v_mov_b32 v{vV}, s38")
    A("s_mov_b64 exec, 1")
    A(f"buffer_store_dword v{vV}, v{vK}, s[20:23], s40 offen sc0 sc1")
    A("s_mov_b64 exec, -1")
    A.label(f"{NAME}_noid")
    A(f"v_and_b32 v{vTmp}, 2, v0")
    A(f"v_add_u32 v{vTmp}, -1, v{vTmp}")
    A(f"v_ashrrev_i32 v{vTmp}, 31, v{vTmp}")
    A(f"v_and_b32 v{P}, 0x3f80, v{vTmp}")
    A(f"v_mov_b32 v{P+1}, 0")
    A(f"v_lshlrev_b32 v{vTmp}, 3, v0")
    A(f"v_add_u32 v{vTmp}, {ONESB}, v{vTmp}")
    A(f"ds_write_b64 v{vTmp}, {v(P,2)}")
    A(f"ds_write_b64 v{vTmp}, {v(P,2)} offset:4096")
    A(f"ds_write_b64 v{vTmp}, {v(P,2)} offset:6144")
    A(f"v_add_u32 v{vK}, s57, v{vLo}")
    A(f"v_and_b32 v{vTmp}, 1, v{vL}")
    A(f"v_lshlrev_b32 v{vV0}, 9, v{vTmp}")
    A(f"v_xor_b32 v{vTmp}, v{vTmp}, v{vTmp2}")
    A(f"v_lshl_add_u32 v{vV0}, v{vTmp}, 6, v{vV0}")
    A(f"v_bfe_u32 v{vTmp}, v{vL}, 2, 2")
    A(f"v_lshl_add_u32 v{vV0}, v{vTmp}, 4, v{vV0}")
    A(f"v_bfe_u32 v{vTmp}, v{vL}, 1, 1")
    A(f"v_lshl_add_u32 v{vV0}, v{vTmp}, 3, v{vV0}")
    A("s_add_u32 s40, s57, 2048")
    A(f"v_add_u32 v{vV}, s40, v{vV0}")
    A(f"v_and_b32 v{vTmp}, 15, v{vL}")
    A(f"v_lshlrev_b32 v{vTmp}, 3, v{vTmp}")
    A(f"v_add_u32 v{vTmp}, {ONESB+128}, v{vTmp}")
    A(f"v_and_b32 v{vTmp2}, 16, v{vL}")
    A(f"v_cmp_eq_u32 s[50:51], 0, v{vTmp2}")
    A(f"v_mov_b32 v{vInc}, 8192")
    for r in range(4): A(f"v_mov_b32 v{P+4+r}, 0")
    A(f"v_cndmask_b32 v{vV}, v{vTmp}, v{vV}, s[50:51]")
    A(f"v_cndmask_b32 v{vInc}, 0, v{vInc}, s[50:51]")
    for r in range(4): A(f"v_mov_b32 v{VF+12+r}, 0")
    for r in range(32): A(f"v_mov_b32 v{O+r}, 0")
    A(f"v_lshlrev_b32 v{vPf}, 7, v{vL}")
    A("s_lshl_b32 s52, s32, 5")
    A("s_add_u32 s52, s52, s35")
    A("s_lshl_b32 s52, s52, 13")
    A("s_lshr_b32 s40, s52, 13")
    A(f"s_mul_i32 s55, s34, {8*HHKS*1024}")
    A(f"s_add_u32 s55, s55, {WS_HH}")
    A("s_add_u32 s55, s55, s52")
    A("s_cmp_lt_u32 s40, 88")
    A(f"s_cbranch_scc1 {NAME}_tch")
    A("s_lshl_b32 s55, s34, 18")
    A("s_add_u32 s55, s55, s52")
    A(f"s_add_u32 s55, s55, {WS_H - 88*8192}")
    A("s_cmp_lt_u32 s40, 120")
    A(f"s_cbranch_scc1 {NAME}_tch")
    A("s_lshl_b32 s55, s34, 15")
    A("s_add_u32 s55, s55, s52")
    A(f"s_add_u32 s55, s55, {WS_ST - 120*8192}")
    A("s_cmp_lt_u32 s40, 124")
    A(f"s_cbranch_scc1 {NAME}_tch")
    A("s_lshl_b32 s55, s40, 16")
    A("s_lshl_b32 s56, s34, 13")
    A("s_add_u32 s55, s55, s56")
    A(f"s_add_u32 s55, s55, {(WS_O - 124*65536) & 0xffffffff:#x}")
    A("s_cmp_lt_u32 s40, 156")
    A(f"s_cselect_b32 s55, s55, {BIG:#x}")
    A.label(f"{NAME}_tch")
    A(f"v_and_b32 v{vTmp}, 31, v{vL}")
    A(f"v_lshlrev_b32 v{vX}, 10, v{vTmp}")
    A(f"v_lshrrev_b32 v{vTmp}, 5, v{vL}")
    A(f"v_lshl_add_u32 v{vX}, v{vTmp}, 3, v{vX}")
    A("s_and_b32 s56, s35, 3")
    A("s_lshl_b32 s40, s34, 2")
    A("s_add_u32 s56, s56, s40")
    A("s_lshl_b32 s56, s56, 1")
    A("s_and_b32 s40, s32, 1")
    A("s_add_u32 s56, s56, s40")
    A("s_lshl_b32 s56, s56, 15")
    A("s_lshr_b32 s40, s35, 2")
    A("s_lshl_b32 s40, s40, 7")
    A("s_add_u32 s56, s56, s40")
    A("s_bfe_u32 s40, s32, 0x10001")
    A("s_lshl_b32 s40, s40, 6")
    A("s_add_u32 s56, s56, s40")
    A("s_cmp_lt_u32 s32, 4")
    A(f"s_cselect_b32 s56, s56, {BIG:#x}")
    w128_voff(A, vWo)
    A("s_lshr_b32 s53, s35, 2")
    A("s_lshl_b32 s53, s53, 7")
    A("s_lshl_b32 s40, s32, 13")
    A("s_add_u32 s53, s53, s40")
    A("s_lshl_b32 s54, s32, 10")
    A(f"v_lshrrev_b32 v{vTmp}, 2, v{vL}")
    A(f"v_mul_u32_u24 v{vW4}, 2752, v{vTmp}")
    A(f"v_and_b32 v{vTmp}, 3, v{vL}")
    A(f"v_lshl_add_u32 v{vW4}, v{vTmp}, 4, v{vW4}")
    A("s_lshr_b32 s58, s35, 1")
    A("s_mul_i32 s58, s58, 192")
    A(f"s_mul_i32 s40, s33, {16*2752}")
    A("s_add_u32 s58, s58, s40")
    A("s_mul_i32 s59, s42, 12288")
    A("s_lshl_b32 s40, s33, 10")
    A("s_add_u32 s59, s59, s40")
    A(f"s_add_u32 s59, s59, {64*K}")
    A("s_mov_b64 s[24:25], s[8:9]")
    A(f"s_mov_b32 s26, {512*1024}")
    A("s_mov_b32 s27, 0x20000")
    A("s_mov_b32 s31, 0x20000")
    A("s_mov_b32 s49, 0")
    A.stamp()
    A("s_waitcnt vmcnt(0) lgkmcnt(0)")
    A("s_barrier")
    A.stamp()
    def rdK(t): A(f"ds_read_b128 {v(KF,4)}, v{vK} offset:{t*4096}")
    def rdV(t, buf):
        for u in range(2):
            for rd in range(2):
                A(f"ds_read_b64_tr_b16 {v(VF+buf*8+u*4+rd*2,2)}, v{vV} offset:{t*4096+u*256+rd*128}")
    def ex(r): A(f"v_exp_f32 v{r}, v{r}")
    rdK(0); rdV(0, 0)
    kv(4)
    A("s_waitcnt lgkmcnt(4)")
    mm(A, S, KF, QF, "0")
    A("s_nop 7"); A("s_nop 1")
    A.raw(".p2align 6")
    A.label(f"{NAME}_aloop")
    for kt in range(4):
        vb = kt & 1
        for b in range(2):
            Sb = S + 16*b
            Oc, Op = O + 16*b, O + 16*(b ^ 1)
            if b == 1: A("s_waitcnt lgkmcnt(4)")
            mm(A, S + 16*(b ^ 1), KF, QF + 4*(b ^ 1), "0")
            if b == 0: rdK(kt + 1)
            for r in range(6): ex(Sb + r)
            pvb = vb if b == 1 else vb ^ 1
            mm(A, Op, VF + pvb*8 + 4, P + 4, v(Op, 16))
            if b == 0: rdV((kt & 1) + 1, vb ^ 1)
            if kt == 3 and b == 1:
                A("s_add_u32 s49, s49, 1")
            ex(Sb + 6); ex(Sb + 7)
            for r in range(4): A(f"v_cvt_pk_bf16_f32 v{P+r}, v{Sb+2*r}, v{Sb+2*r+1}")
            for r in range(8, 11): ex(Sb + r)
            if b == 0: A("s_waitcnt lgkmcnt(5)")
            mm(A, Oc, VF + vb*8, P, v(Oc, 16))
            for r in range(11, 16): ex(Sb + r)
            if kt == 3 and b == 1: A(f"v_add_u32 v{vK}, 16384, v{vK}")
            if (kt & 1) and b == 1: A(f"v_add_u32 v{vV}, v{vInc}, v{vV}")
            for r in range(4): A(f"v_cvt_pk_bf16_f32 v{P+4+r}, v{Sb+8+2*r}, v{Sb+8+2*r+1}")
    def pf(ptr, size, tag):
        A(f"s_cmp_ge_u32 s52, {size}")
        A(f"s_cbranch_scc1 {NAME}_pf{tag}")
        A(f"s_mov_b64 s[28:29], s[{ptr}:{ptr+1}]")
        A(f"s_mov_b32 s30, {size}")
        A(f"buffer_load_dword v{vDum}, v{vPf}, s[28:31], s52 offen")
        A.label(f"{NAME}_pf{tag}")
    def wo4():
        for i in range(4):
            A(f"s_add_u32 m0, s54, {i*8192}")
            A(f"s_add_u32 s40, s53, {i*0x10000}")
            A(f"buffer_load_dwordx4 v{vWo}, s[24:27], s40 offen lds")
        A("s_add_u32 s53, s53, 0x40000")
        A("s_add_u32 s54, s54, 32768")
    def sv1(): A("s_waitcnt vmcnt(0)"); A("s_barrier"); kv(5)
    def sv2(): kv(4)
    def sv3():
        A("s_waitcnt vmcnt(0)"); A("s_barrier")
        if os.environ.get("X_NOPFD") != "1": pf(16, 1376*1024, "d")
    def sv4():
        A(f"s_cmp_eq_u32 s55, {BIG:#x}")
        A(f"s_cbranch_scc1 {NAME}_pft")
        A(f"buffer_load_dword v{vDum}, v{vPf}, s[20:23], s55 offen")
        A.label(f"{NAME}_pft")
    def sv5(): pf(14, 512*2752, "u")
    def sv6():
        A("s_barrier"); wo4(); pf(12, 512*2752, "g")
    def sv7():
        wo4()
        A("s_cmp_lt_u32 s32, 4")
        A("s_cselect_b32 s28, s12, s14")
        A("s_cselect_b32 s29, s13, s15")
        A(f"s_mov_b32 s30, {512*2752}")
        A("s_mov_b32 m0, s59")
        A("s_nop 0")
        for cbk in range(3):
            A(f"buffer_load_dwordx4 v{vW4}, s[28:31], s58 offen offset:{cbk*64} lds")
            A(f"s_add_u32 m0, m0, {4096-64}")
            A("s_nop 0")
        A("s_cmp_ge_u32 s32, 4")
        A(f"s_cbranch_scc1 {NAME}_aloop")
        A("s_mov_b64 s[28:29], s[4:5]")
        A(f"s_mov_b32 s30, {2048*1024}")
        for g in range(4):
            A(f"buffer_load_dwordx2 {v(RES+2*g,2)}, v{vX}, s[28:31], s56 offen offset:{g*16}")
    for it, f in enumerate([sv1, sv2, sv3, sv4, sv5, sv6, sv7], 1):
        A(f"s_cmp_lg_u32 s49, {it}")
        A(f"s_cbranch_scc1 {NAME}_sv{it}")
        f()
        A(f"s_branch {NAME}_aloop")
        A.label(f"{NAME}_sv{it}")
    A.label(f"{NAME}_adone")
    A.stamp()
    mm(A, O + 16, VF + 8 + 4, P + 4, v(O + 16, 16))
    A(f"v_and_b32 v{vTmp}, 31, v{vL}")
    A(f"v_lshlrev_b32 v{vPf}, 2, v{vTmp}")
    A(f"buffer_load_dword v{vId}, v{vPf}, s[20:23], s37 offen sc0 sc1")
    A("s_lshl_b32 s40, s33, 1")
    A("s_add_u32 s40, s40, s42")
    A("s_mul_i32 s43, s40, 2304")
    A("s_xor_b32 s40, s40, 1")
    A("s_mul_i32 s40, s40, 2304")
    A(f"s_add_u32 s40, s40, {CMB}")
    A(f"s_add_u32 s43, s43, {CMB}")
    A(f"v_lshlrev_b32 v{vTmp2}, 2, v{vL}")
    A(f"v_add_u32 v{vK}, s40, v{vLo}")
    A(f"v_add_u32 v{vV}, s40, v{vTmp2}")
    A(f"v_add_u32 v{vTmp}, s43, v{vLo}")
    A(f"v_add_u32 v{vTmp2}, s43, v{vTmp2}")
    A("s_cmp_eq_u32 s42, 0")
    A(f"s_cbranch_scc1 {NAME}_k0")
    A(f"ds_write_b128 v{vK}, {v(O,4)}")
    A(f"ds_write_b128 v{vK}, {v(O+4,4)} offset:1024")
    A(f"ds_write_b32 v{vV}, v{O+8} offset:2048")
    A("s_add_u32 s48, s48, 1024")
    for r in range(4): A(f"v_mov_b32 v{QF+r}, v{QF+4+r}")
    A("s_waitcnt lgkmcnt(0)")
    for r in range(9): A(f"v_mov_b32 v{O+r}, v{O+16+r}")
    A(f"s_branch {NAME}_bar")
    A.label(f"{NAME}_k0")
    A(f"ds_write_b128 v{vK}, {v(O+16,4)}")
    A(f"ds_write_b128 v{vK}, {v(O+20,4)} offset:1024")
    A(f"ds_write_b32 v{vV}, v{O+24} offset:2048")
    A("s_waitcnt lgkmcnt(0)")
    A.label(f"{NAME}_bar")
    A("s_barrier")
    A(f"ds_read_b128 {v(S,4)}, v{vTmp}")
    A(f"ds_read_b128 {v(S+4,4)}, v{vTmp} offset:1024")
    A(f"ds_read_b32 v{S+8}, v{vTmp2} offset:2048")
    A("s_mov_b32 s40, 0")
    A.label(f"{NAME}_idp")
    A("s_waitcnt vmcnt(0)")
    A(f"v_cmp_eq_u32 vcc, 0, v{vId}")
    A(f"s_cbranch_vccz {NAME}_idok")
    A(f"buffer_load_dword v{vId}, v{vPf}, s[20:23], s37 offen sc0 sc1")
    A("s_add_u32 s40, s40, 1")
    A(f"s_cmp_lt_u32 s40, {SPIN}")
    A(f"s_cbranch_scc1 {NAME}_idp")
    A("s_waitcnt vmcnt(0)")
    A.label(f"{NAME}_idok")
    A(f"v_cmp_ne_u32 vcc, s38, v{vId}")
    A(f"s_mov_b32 s44, {f32bits(2.0**-60):#x}")
    A(f"s_mov_b32 s45, {f32bits(2.0**60):#x}")
    A(f"s_mov_b32 s46, {f32bits(2.0**126):#x}")
    A("s_cmp_lg_u64 vcc, 0")
    A("s_cselect_b32 s36, 1, 0")
    if os.environ.get("FORCE_SLOW") == "1": A("s_mov_b32 s36, 1")
    A("s_waitcnt lgkmcnt(0)")
    for r in range(0, 8, 2): A(f"v_pk_add_f32 {v(O+r,2)}, {v(O+r,2)}, {v(S+r,2)}")
    A(f"v_add_f32 v{O+8}, v{O+8}, v{S+8}")
    A(f"v_max3_f32 v{vTmp}, |v{O}|, |v{O+1}|, |v{O+2}|")
    A(f"v_max3_f32 v{vTmp}, |v{O+3}|, |v{O+4}|, v{vTmp}")
    A(f"v_max3_f32 v{vTmp}, |v{O+5}|, |v{O+6}|, v{vTmp}")
    A(f"v_max_f32 v{vTmp}, |v{O+7}|, v{vTmp}")
    A(f"v_cmp_nge_f32 s[56:57], v{O+8}, s44")
    A(f"v_cmp_nle_f32 s[58:59], v{O+8}, s45")
    A(f"v_cmp_nle_f32 vcc, v{vTmp}, s46")
    A("s_or_b64 s[56:57], s[56:57], s[58:59]")
    A("s_or_b64 s[56:57], s[56:57], vcc")
    A("s_cmp_eq_u64 s[56:57], 0")
    A(f"s_cbranch_scc0 {NAME}_slow")
    A.label(f"{NAME}_fin")
    A(f"v_rcp_f32 v{vTmp}, v{O+8}")
    A(f"s_add_u32 s48, s48, {WS_O}")
    for r in range(8): A(f"v_mul_f32 v{O+r}, v{O+r}, v{vTmp}")
    for r in range(4): A(f"v_cvt_pk_bf16_f32 v{P+r}, v{O+2*r}, v{O+2*r+1}")
    store2(A, "so", [f"buffer_store_dwordx4 {v(P,4)}, v{vLo}, s[20:23], s48 offen{{f}}"])
    def slow():
        A.label(f"{NAME}_slow")
        CB = S + 16
        A(f"v_mov_b32 v{vTmp}, 0xff800000")
        A(f"s_add_u32 s44, s41, {WS_K}")
        A("s_mov_b32 s40, 0")
        A.label(f"{NAME}_maxloop")
        A(f"buffer_load_dwordx4 {v(KF,4)}, v{vLo}, s[20:23], s44 offen")
        A("s_add_u32 s44, s44, 1024")
        A("s_waitcnt vmcnt(0)")
        mm(A, S, KF, QF, "0")
        A("s_add_u32 s40, s40, 1")
        A("s_nop 15")
        for r in range(8): A(f"v_max3_f32 v{vTmp}, v{S+2*r}, v{S+2*r+1}, v{vTmp}")
        A("s_cmp_lt_u32 s40, 64")
        A(f"s_cbranch_scc1 {NAME}_maxloop")
        A(f"v_mov_b32 v{vTmp2}, v{vTmp}")
        A("s_nop 1")
        A(f"v_permlane32_swap_b32 v{vTmp}, v{vTmp2}")
        A("s_nop 1")
        A(f"v_max_f32 v{vTmp}, v{vTmp}, v{vTmp2}")
        for r in range(16):
            A(f"v_sub_f32 v{CB+r}, 0, v{vTmp}")
            A(f"v_mov_b32 v{O+r}, 0")
        A("s_mov_b32 s45, s43")
        A(f"v_add_u32 v{vV}, s45, v{vV0}")
        A(f"v_and_b32 v{vTmp}, 15, v{vL}")
        A(f"v_lshlrev_b32 v{vTmp}, 3, v{vTmp}")
        A(f"v_add_u32 v{vTmp}, {ONESB+128}, v{vTmp}")
        A(f"v_cndmask_b32 v{vV}, v{vTmp}, v{vV}, s[50:51]")
        A(f"v_lshrrev_b32 v{vTmp}, 5, v{vL}")
        A(f"v_lshlrev_b32 v{vTmp}, 6, v{vTmp}")
        A(f"v_xor_b32 v{vD}, v{vTmp}, v{vLo}")
        A("s_mov_b32 m0, s45")
        A(f"s_add_u32 s44, s41, {WS_K}")
        A("s_mov_b32 s40, 0")
        A.label(f"{NAME}_sloop")
        A(f"s_add_u32 s45, s44, {WS_V - WS_K}")
        A(f"buffer_load_dwordx4 {v(KF,4)}, v{vLo}, s[20:23], s44 offen")
        A(f"buffer_load_dwordx4 v{vD}, s[20:23], s45 offen lds")
        A("s_add_u32 s44, s44, 1024")
        A("s_waitcnt vmcnt(0)")
        mm(A, S, KF, QF, v(CB, 16))
        rdV(0, 0)
        A("s_add_u32 s40, s40, 1")
        A("s_nop 15")
        for r in range(16): ex(S + r)
        for r in range(8): A(f"v_cvt_pk_bf16_f32 v{P+r}, v{S+2*r}, v{S+2*r+1}")
        A("s_waitcnt lgkmcnt(0)")
        A("s_cmp_lt_u32 s40, 64")
        mm(A, O, VF, P, v(O, 16))
        mm(A, O, VF + 4, P + 4, v(O, 16))
        A(f"s_cbranch_scc1 {NAME}_sloop")
        A("s_nop 15")
        A(f"s_branch {NAME}_fin")
    return slow


SLOT4 = [64*K, 88*K, 112*K, 0, 24*K, 136*K, 64*K, 88*K]
CS4 = 56*K
RED3 = 136*K
RED5 = 16*K

def helper(A):
    vWo, vW2, vWd, vCb, vCr, vCs = 112, 8, 115, 9, 10, 11
    SEL, CSA, FR = 12, 16, 40
    A("s_lshr_b32 s42, s35, 2")
    A("s_lshr_b32 s43, s35, 1")
    A("s_mul_i32 s47, s43, 192")
    A(f"s_mul_i32 s40, s33, {16*2752}")
    A("s_add_u32 s47, s47, s40")
    A(f"s_add_u32 s47, s47, {64*2752}")
    A("s_lshl_b32 s48, s33, 10")
    A("s_lshl_b32 s45, s33, 11")
    A("s_mov_b64 s[24:25], s[12:13]")
    A(f"s_mov_b32 s26, {512*2752}")
    A("s_mov_b64 s[28:29], s[14:15]")
    A(f"s_mov_b32 s30, {512*2752}")
    A(f"v_add_u32 v{vW2}, {8192-1024}, v{vWo}")
    A("s_lshl_b32 s52, s42, 7")
    A("s_lshl_b32 s40, s33, 14")
    A("s_add_u32 s52, s52, s40")
    A("s_mov_b64 s[56:57], s[16:17]")
    A(f"s_mov_b32 s58, {1376*1024}")
    A("s_mov_b32 s59, 0x20000")
    def w4(c):
        A(f"s_add_u32 m0, s48, {SLOT4[c]}")
        A(f"s_call_b64 s[64:65], {NAME}_w4")
    def cs4(c):
        A(f"v_add_u32 v{vCr}, {SLOT4[c]}, v{vCb}")
        A(f"s_call_b64 s[64:65], {NAME}_cs4")
    def w5(n0, cnt):
        A(f"s_add_u32 s53, s45, {(n0 % 20)*8192}")
        A(f"s_add_u32 s54, s52, {n0*65536}")
        A(f"s_mov_b32 s55, {cnt}")
        A(f"s_call_b64 s[64:65], {NAME}_w5")
    A("s_cmp_ge_u32 s43, 15")
    A(f"s_cbranch_scc1 {NAME}_hidle")
    w4(1); w4(2)
    A(f"v_bfe_u32 v{vTmp}, v{vL}, 2, 2")
    A(f"v_lshrrev_b32 v{vTmp2}, 5, v{vL}")
    A(f"v_lshl_add_u32 v{vTmp}, v{vTmp2}, 2, v{vTmp}")
    A(f"v_lshlrev_b32 v{vCb}, 6, v{vTmp}")
    A(f"v_bfe_u32 v{vTmp}, v{vL}, 4, 1")
    A(f"v_lshl_add_u32 v{vCb}, v{vTmp}, 5, v{vCb}")
    A(f"v_and_b32 v{vTmp}, 3, v{vL}")
    A(f"v_lshl_add_u32 v{vCb}, v{vTmp}, 3, v{vCb}")
    A(f"v_add_u32 v{vCb}, s48, v{vCb}")
    A(f"v_lshrrev_b32 v{vTmp}, 2, v{vL}")
    A(f"v_xor_b32 v{vTmp}, v{vTmp}, v{vL}")
    A(f"v_bfe_u32 v{vTmp}, v{vTmp}, 2, 1")
    A(f"v_add_u32 v{vTmp}, -1, v{vTmp}")
    for r in range(4): A(f"v_and_b32 v{SEL+r}, 0x3f803f80, v{vTmp}")
    for r in range(24): A(f"v_mov_b32 v{CSA+r}, 0")
    A(f"v_and_b32 v{vCs}, 31, v{vL}")
    A(f"v_lshlrev_b32 v{vCs}, 2, v{vCs}")
    A("s_mul_i32 s40, s33, 768")
    A(f"s_add_u32 s40, s40, {CS4}")
    A(f"v_add_u32 v{vCs}, s40, v{vCs}")
    cs4(0)
    A("s_waitcnt vmcnt(6)"); cs4(1)
    A("s_waitcnt vmcnt(0)"); cs4(2)
    A.stamp()
    A("s_barrier")
    w4(3); w4(4)
    A("s_waitcnt vmcnt(6)"); cs4(3)
    A("s_waitcnt vmcnt(0)"); cs4(4)
    A.stamp()
    A("s_barrier")
    A.stamp()
    A("s_barrier")
    A.stamp()
    w4(5); w4(6); w4(7)
    A("s_waitcnt vmcnt(12)"); cs4(5)
    A("s_waitcnt vmcnt(6)"); cs4(6)
    A("s_waitcnt vmcnt(0)"); cs4(7)
    A("s_nop 7")
    for blk in range(6): A(f"ds_write_b32 v{vCs}, v{CSA+4*blk} offset:{blk*128}")
    A("s_waitcnt lgkmcnt(0)")
    A.stamp()
    A("s_barrier")
    A(f"v_and_b32 v{vTmp}, 255, v0")
    A(f"v_lshlrev_b32 v{vTmp}, 2, v{vTmp}")
    A(f"v_add_u32 v{vTmp}, {CS4}, v{vTmp}")
    for p in range(4): A(f"ds_read_b32 v{CSA+p}, v{vTmp} offset:{p*768}")
    A("s_waitcnt lgkmcnt(0)")
    A(f"v_add_f32 v{CSA}, v{CSA}, v{CSA+1}")
    A(f"v_add_f32 v{CSA+2}, v{CSA+2}, v{CSA+3}")
    A(f"v_add_f32 v{CSA}, v{CSA}, v{CSA+2}")
    A(f"ds_write_b32 v{vTmp}, v{CSA} offset:4096")
    w5(0, 7); w5(14, 3)
    A("s_waitcnt lgkmcnt(0)")
    A("s_barrier")
    A("s_barrier")
    w5(7, 7); w5(17, 3)
    A(f"s_branch {NAME}_h5")
    A.label(f"{NAME}_hidle")
    w5(8, 9)
    A("s_barrier")
    w5(0, 8)
    A("s_barrier")
    w5(17, 3)
    A.label(f"{NAME}_h5")
    A("s_waitcnt vmcnt(0)")
    A.stamp()
    A("s_barrier")
    A("s_barrier")
    w5(20, 2)
    A("s_waitcnt vmcnt(0)")
    A("s_barrier")
    A.dump(2, 4, 33)
    A("s_endpgm")
    A.label(f"{NAME}_w4")
    for blk in range(6):
        m, cbk = blk // 3, blk % 3
        A(f"buffer_load_dwordx4 v{vWd}, s[{24+4*m}:{27+4*m}], s47 offen offset:{cbk*64} lds")
        if blk < 5:
            A(f"s_add_u32 m0, m0, {4096-64 if cbk < 2 else 4096+128}")
            A("s_nop 0")
    A(f"s_add_u32 s47, s47, {64*2752}")
    A("s_setpc_b64 s[64:65]")
    A.label(f"{NAME}_cs4")
    for blk in range(6):
        for rd in range(2):
            A(f"ds_read_b64_tr_b16 {v(FR+blk*4+rd*2,2)}, v{vCr} offset:{blk*4096 + rd*512}")
    for blk in range(6):
        A(f"s_waitcnt lgkmcnt({10-2*blk})")
        A(f"v_mfma_f32_16x16x32_bf16 {v(CSA+4*blk,4)}, {v(SEL,4)}, {v(FR+4*blk,4)}, {v(CSA+4*blk,4)}")
    A("s_setpc_b64 s[64:65]")
    A.label(f"{NAME}_w5")
    A("s_mov_b32 m0, s53")
    A("s_add_u32 s53, s53, 8192")
    A(f"buffer_load_dwordx4 v{vWo}, s[56:59], s54 offen lds")
    A(f"buffer_load_dwordx4 v{vW2}, s[56:59], s54 offen offset:1024 lds")
    A("s_add_u32 s54, s54, 0x10000")
    A("s_sub_u32 s55, s55, 1")
    A("s_cmp_lg_u32 s55, 0")
    A(f"s_cbranch_scc1 {NAME}_w5")
    A("s_setpc_b64 s[64:65]")

def wtr128(A, d0, d1, kh_sgpr):
    A(f"v_bfe_u32 v{vTmp}, v{vL}, 2, 2")
    A(f"v_lshrrev_b32 v{vTmp2}, 5, v{vL}")
    A(f"v_lshl_add_u32 v{vTmp2}, v{vTmp2}, 2, v{vTmp}")
    A(f"v_lshlrev_b32 v{d0}, 7, v{vTmp2}")
    A(f"v_lshrrev_b32 v{vTmp}, 1, v{vTmp}")
    A(f"v_lshl_add_u32 v{d0}, v{vTmp}, 6, v{d0}")
    A(f"v_bfe_u32 v{vTmp}, v{vL}, 4, 1")
    A(f"v_and_b32 v{vTmp2}, 3, v{vL}")
    A(f"v_lshl_add_u32 v{vTmp}, v{vTmp}, 2, v{vTmp2}")
    A(f"v_lshl_add_u32 v{d0}, v{vTmp}, 3, v{d0}")
    A(f"s_lshl_b32 s40, {kh_sgpr}, 11")
    A(f"v_add_u32 v{d0}, s40, v{d0}")
    A(f"v_xor_b32 v{d1}, 64, v{d0}")

def exchange(A, tag, acc, area, T):
    A("s_xor_b32 s40, s33, 2")
    A("s_lshl_b32 s40, s40, 12")
    A(f"s_add_u32 s40, s40, {area}")
    A(f"v_add_u32 v{vTmp}, s40, v{vLo}")
    A("s_lshl_b32 s40, s33, 12")
    A(f"s_add_u32 s40, s40, {area}")
    A(f"v_add_u32 v{vTmp2}, s40, v{vLo}")
    A("s_nop 4")
    A("s_cmp_eq_u32 s45, 0")
    A(f"s_cbranch_scc1 {NAME}_{tag}0")
    for g in range(4): A(f"ds_write_b128 v{vTmp}, {v(acc+4*g,4)} offset:{g*1024}")
    A("s_waitcnt lgkmcnt(0)")
    for r in range(0, 16, 2): A(f"v_pk_mov_b32 {v(acc+r,2)}, {v(acc+16+r,2)}, {v(acc+16+r,2)} op_sel:[0,1]")
    A(f"s_branch {NAME}_{tag}1")
    A.label(f"{NAME}_{tag}0")
    for g in range(4): A(f"ds_write_b128 v{vTmp}, {v(acc+16+4*g,4)} offset:{g*1024}")
    A("s_waitcnt lgkmcnt(0)")
    A.label(f"{NAME}_{tag}1")
    A("s_barrier")
    for g in range(4): A(f"ds_read_b128 {v(acc+16+4*g,4)}, v{vTmp2} offset:{g*1024}")
    for i in range(8):
        A(f"v_lshlrev_b32 v{T+2*i}, 16, v{RES+i}")
        A(f"v_and_b32 v{T+2*i+1}, 0xffff0000, v{RES+i}")
    for r in range(0, 16, 2): A(f"v_pk_add_f32 {v(T+r,2)}, {v(T+r,2)}, {v(acc+r,2)}")
    A("s_waitcnt lgkmcnt(0)")
    for r in range(0, 16, 2): A(f"v_pk_add_f32 {v(T+r,2)}, {v(T+r,2)}, {v(acc+16+r,2)}")
    for i in range(8): A(f"v_cvt_pk_bf16_f32 v{RES+i}, v{T+2*i}, v{T+2*i+1}")

def compute(A):
    vW0, vW1 = 2, 3
    signal(A, 1, "f1")
    AC3, AF3, WF3 = 224, 8, 72
    A("s_and_b32 s41, s35, 3")
    A("s_lshl_b32 s42, s34, 2")
    A("s_add_u32 s41, s41, s42")
    A("s_lshr_b32 s42, s35, 2")
    A("s_lshr_b32 s43, s35, 1")
    A("s_and_b32 s44, s33, 1")
    A("s_lshr_b32 s45, s33, 1")
    A("s_lshl_b32 s46, s41, 1")
    A("s_add_u32 s46, s46, s44")
    wtr128(A, vW0, vW1, "s45")
    for i in range(16):
        for cw in range(2):
            for rd in range(2):
                A(f"ds_read_b64_tr_b16 {v(WF3+i*8+cw*4+rd*2,2)}, v{(vW0, vW1)[cw]} offset:{i*4096 + rd*1024}")
    A("s_lshl_b32 s49, s46, 10")
    A("s_lshl_b32 s40, s45, 16")
    A("s_add_u32 s49, s49, s40")
    A(f"s_add_u32 s49, s49, {WS_O}")
    A("s_lshl_b32 s47, s42, 2")
    A("s_lshl_b32 s40, s45, 1")
    A("s_add_u32 s47, s47, s40")
    A("s_lshl_b32 s47, s47, 10")
    A("s_lshl_b32 s40, s46, 15")
    A("s_add_u32 s47, s47, s40")
    A(f"s_add_u32 s47, s47, {WS_H}")
    A("s_lshl_b32 s48, s46, 12")
    A("s_lshl_b32 s40, s42, 9")
    A("s_add_u32 s48, s48, s40")
    A("s_lshl_b32 s40, s45, 8")
    A("s_add_u32 s48, s48, s40")
    A(f"s_add_u32 s48, s48, {WS_ST}")
    A("s_lshl_b32 s53, s34, 3")
    A("s_and_b32 s40, s35, 1")
    A("s_lshl_b32 s40, s40, 2")
    A("s_add_u32 s53, s53, s40")
    A("s_add_u32 s53, s53, s33")
    A(f"s_mul_i32 s50, s53, {HHKS}")
    A("s_mul_i32 s40, s43, 6")
    A("s_add_u32 s50, s50, s40")
    A("s_lshl_b32 s50, s50, 10")
    A(f"s_add_u32 s50, s50, {WS_HH}")
    A("s_lshl_b32 s54, s53, 15")
    A(f"s_add_u32 s54, s54, {WS_H}")
    A("s_lshl_b32 s55, s53, 12")
    A(f"s_add_u32 s55, s55, {WS_ST}")
    A(f"s_mov_b32 s56, {f32bits(1.0/512):#x}")
    A(f"s_mov_b32 s57, {f32bits(1e-5):#x}")
    A(f"s_mov_b32 s58, {f32bits(-math.log2(math.e)):#x}")
    wait_flags(A, 1, "p1", 200)
    A.stamp()
    for i in range(16):
        A(f"buffer_load_dwordx4 {v(AF3+4*i,4)}, v{vLo}, s[20:23], s49 offen sc1")
        A("s_add_u32 s49, s49, 0x20000")
    A("s_waitcnt lgkmcnt(0)")
    for i in range(16):
        A(f"s_waitcnt vmcnt({15-i})")
        for cw in range(2):
            mm(A, AC3 + 16*cw, WF3 + i*8 + cw*4, AF3 + 4*i, "0" if i == 0 else v(AC3 + 16*cw, 16))
    A.stamp()
    T = 8
    exchange(A, "x3", AC3, RED3, T)
    store2(A, "sh", [f"buffer_store_dwordx4 {v(RES+4*e,4)}, v{vLo}, s[20:23], s47 offen offset:{e*1024}{{f}}" for e in range(2)])
    for i in range(8):
        A(f"v_lshlrev_b32 v{T+2*i}, 16, v{RES+i}")
        A(f"v_and_b32 v{T+2*i+1}, 0xffff0000, v{RES+i}")
    s1, s2 = T+16, T+18
    A(f"v_pk_add_f32 {v(s1,2)}, {v(T,2)}, {v(T+2,2)}")
    A(f"v_pk_mul_f32 {v(s2,2)}, {v(T,2)}, {v(T,2)}")
    A(f"v_pk_fma_f32 {v(s2,2)}, {v(T+2,2)}, {v(T+2,2)}, {v(s2,2)}")
    for r in range(4, 16, 2):
        A(f"v_pk_add_f32 {v(s1,2)}, {v(s1,2)}, {v(T+r,2)}")
        A(f"v_pk_fma_f32 {v(s2,2)}, {v(T+r,2)}, {v(T+r,2)}, {v(s2,2)}")
    A(f"v_add_f32 v{s1}, v{s1}, v{s1+1}")
    A(f"v_add_f32 v{s1+1}, v{s2}, v{s2+1}")
    A(f"v_mov_b32 v{s2}, v{s1}")
    A(f"v_mov_b32 v{s2+1}, v{s1+1}")
    A(f"v_and_b32 v{vW0}, 31, v{vL}")
    A(f"v_lshlrev_b32 v{vW0}, 3, v{vW0}")
    A(f"v_permlane32_swap_b32 v{s1}, v{s2}")
    A(f"v_permlane32_swap_b32 v{s1+1}, v{s2+1}")
    A("s_nop 1")
    A(f"v_pk_add_f32 {v(s1,2)}, {v(s1,2)}, {v(s2,2)}")
    A("s_mov_b32 exec_hi, 0")
    store2(A, "ss", [f"buffer_store_dwordx2 {v(s1,2)}, v{vW0}, s[20:23], s48 offen{{f}}"])
    A("s_mov_b32 exec_hi, -1")
    signal(A, 2, "f2")
    A.stamp()
    WF, XR, ACC = 8, 32, 160
    KS, MN, vWr, vW4b = 2, 4, 5, 7
    ST = XR + 112
    A("s_cmp_lt_u32 s43, 15")
    A(f"s_cbranch_scc1 {NAME}_c4go")
    A("s_barrier")
    A(f"s_branch {NAME}_c4done")
    A.label(f"{NAME}_c4go")
    A(f"v_lshrrev_b32 v{vTmp2}, 5, v{vL}")
    A(f"v_lshl_add_u32 v{vW1}, v{vTmp2}, 11, v{vW0}")
    wait_flags(A, 2, "p2", WF)
    A.stamp()
    def xl(ks): return f"buffer_load_dwordx4 {v(XR+ks*4,4)}, v{vLo}, s[20:23], s54 offen offset:{(ks & 3)*1024} sc1"
    for e in range(8):
        A(f"buffer_load_dwordx2 {v(ST+2*e,2)}, v{vW1}, s[20:23], s55 offen offset:{e*256} sc1")
    xq = list(range(32))
    nx = [0]
    def xnext(n):
        for _ in range(n):
            if nx[0] < 32:
                A(xl(nx[0]))
                nx[0] += 1
                if nx[0] % 4 == 0: A("s_add_u32 s54, s54, 4096")
    XPRE = int(os.environ.get("XPRE", "8"))
    xnext(XPRE)
    A(f"v_bfe_u32 v{vW1}, v{vL}, 2, 2")
    A(f"v_lshl_add_u32 v{vW1}, v{vTmp2}, 2, v{vW1}")
    A(f"v_lshlrev_b32 v{vW4b}, 6, v{vW1}")
    A(f"v_bfe_u32 v{vW1}, v{vL}, 4, 1")
    A(f"v_lshl_add_u32 v{vW4b}, v{vW1}, 5, v{vW4b}")
    A(f"v_and_b32 v{vW1}, 3, v{vL}")
    A(f"v_lshl_add_u32 v{vW4b}, v{vW1}, 3, v{vW4b}")
    A(f"v_add_u32 v{vWr}, {SLOT4[0]}, v{vW4b}")
    A("s_barrier")
    def rdw(ks, blk):
        for rd in range(2):
            A(f"ds_read_b64_tr_b16 {v(WF+blk*4+rd*2,2)}, v{vWr} offset:{blk*4096 + (ks & 3)*1024 + rd*512}")
    for blk in range(6): rdw(0, blk)
    A(f"s_waitcnt vmcnt({XPRE})")
    for e in range(1, 8): A(f"v_pk_add_f32 {v(ST,2)}, {v(ST,2)}, {v(ST+2*e,2)}")
    A(f"v_mov_b32 v{ST+2}, v{ST}")
    A(f"v_mov_b32 v{ST+3}, v{ST+1}")
    A("s_nop 1")
    A(f"v_permlane32_swap_b32 v{ST}, v{ST+2}")
    A(f"v_permlane32_swap_b32 v{ST+1}, v{ST+3}")
    A("s_nop 1")
    A(f"v_pk_add_f32 {v(ST,2)}, {v(ST,2)}, {v(ST+2,2)}")
    m, r, t0 = MN, KS+1, ST+4
    A(f"v_mul_f32 v{m}, s56, v{ST}")
    A(f"v_mul_f32 v{r}, s56, v{ST+1}")
    A(f"v_fma_f32 v{r}, -v{m}, v{m}, v{r}")
    A(f"v_max_f32 v{r}, 0, v{r}")
    A(f"v_cvt_pk_bf16_f32 v{t0}, v{m}, v{r}")
    A(f"v_lshlrev_b32 v{m}, 16, v{t0}")
    A(f"v_and_b32 v{r}, 0xffff0000, v{t0}")
    A(f"v_add_f32 v{r}, s57, v{r}")
    A(f"v_cvt_pk_bf16_f32 v{t0}, v{r}, v{r}")
    A(f"v_and_b32 v{r}, 0xffff0000, v{t0}")
    A(f"v_sqrt_f32 v{r}, v{r}")
    A(f"v_sub_f32 v{m}, 0, v{m}")
    A(f"v_cvt_pk_bf16_f32 v{t0}, v{r}, v{r}")
    A(f"v_and_b32 v{r}, 0xffff0000, v{t0}")
    A(f"v_rcp_f32 v{KS}, v{r}")
    A("s_nop 0")
    A(f"v_mul_f32 v{KS}, s58, v{KS}")
    A.stamp()
    for ks in range(32):
        c, k = ks >> 2, ks & 3
        last = ks == 31
        order = [0, 3, 1, 4, 2, 5] if last else list(range(6))
        if k == 3 and not last:
            if c in (2, 4, 6):
                A("s_waitcnt lgkmcnt(0)")
                A("s_barrier")
            A(f"v_add_u32 v{vWr}, {SLOT4[c+1]}, v{vW4b}")
        for i, blk in enumerate(order):
            w = []
            if i == 0 and nx[0] > ks: w.append(f"vmcnt({nx[0] - ks - 1})") if ks < 32 and (nx[0] - ks - 1) < 64 else None
            if last: w.append("lgkmcnt(0)") if i == 0 else None
            elif i % 2 == 0: w.append("lgkmcnt(8)")
            if w: A("s_waitcnt " + " ".join(w))
            mm(A, ACC + blk*16, WF + blk*4, XR + ks*4, "0" if ks == 0 else v(ACC + blk*16, 16))
            if not last: rdw(ks + 1, blk)
            if i in (1, 4): xnext(1)
    A.stamp()
    CB_ = XR
    A(f"v_lshrrev_b32 v{vWr}, 5, v{vL}")
    A(f"v_lshlrev_b32 v{vWr}, 4, v{vWr}")
    for cbk in range(3):
        for mm_ in range(2):
            for g_ in range(4):
                A(f"ds_read_b128 {v(CB_+32*cbk+16*mm_+4*g_,4)}, v{vWr} offset:{CS4 + 4096 + (mm_*3+cbk)*128 + g_*32}")
    A("s_waitcnt lgkmcnt(0)")
    A("s_barrier")
    for cbk in range(3):
        G, U = ACC + cbk*16, ACC + (3+cbk)*16
        base = CB_ + 32*cbk
        if cbk == 1:
            A("s_cmp_eq_u32 s43, 14")
            A(f"s_cbranch_scc1 {NAME}_c4t")
        for i in range(0, 16, 2): A(f"v_pk_fma_f32 {v(G+i,2)}, {v(base+i,2)}, {v(MN,2)}, {v(G+i,2)} op_sel_hi:[1,0,1]")
        for i in range(0, 16, 2): A(f"v_pk_mul_f32 {v(G+i,2)}, {v(G+i,2)}, {v(KS,2)} op_sel_hi:[1,0]")
        for r_ in range(16): A(f"v_exp_f32 v{G+r_}, v{G+r_}")
        for i in range(0, 16, 2): A(f"v_pk_fma_f32 {v(U+i,2)}, {v(base+16+i,2)}, {v(MN,2)}, {v(U+i,2)} op_sel_hi:[1,0,1]")
        for i in range(0, 16, 2): A(f"v_pk_fma_f32 {v(G+i,2)}, {v(G+i,2)}, {v(KS,2)}, {v(KS,2)} op_sel:[0,1,1]")
        for r_ in range(16): A(f"v_rcp_f32 v{G+r_}, v{G+r_}")
        A("s_nop 0")
        for i in range(0, 16, 2): A(f"v_pk_mul_f32 {v(G+i,2)}, {v(G+i,2)}, {v(U+i,2)}")
        for i in range(8): A(f"v_cvt_pk_bf16_f32 v{U+i}, v{G+2*i}, v{G+2*i+1}")
        store2(A, f"sg{cbk}", [f"buffer_store_dwordx4 {v(U+4*e,4)}, v{vLo}, s[20:23], s50 offen offset:{e*1024}{{f}}" for e in range(2)])
        A("s_add_u32 s50, s50, 2048")
    A(f"s_branch {NAME}_c4done")
    A.label(f"{NAME}_c4t")
    for r_ in range(4): A(f"v_mov_b32 v{WF+r_}, 0")
    store2(A, "sz", [f"buffer_store_dwordx4 {v(WF,4)}, v{vLo}, s[20:23], s50 offen offset:{e*1024}{{f}}" for e in range(2)])
    A.label(f"{NAME}_c4done")
    signal(A, 3, "f3")
    A.stamp()
    AC5, AF5, WF5 = 224, 8, 56
    vOut = 4
    for e in range(2):
        A(f"buffer_load_dwordx4 {v(RES+4*e,4)}, v{vLo}, s[20:23], s47 offen offset:{e*1024} sc1")
    wtr128(A, vW0, vW1, "s45")
    A(f"v_and_b32 v{vTmp}, 31, v{vL}")
    A(f"v_lshrrev_b32 v{vTmp2}, 5, v{vL}")
    A(f"v_lshlrev_b32 v{vOut}, 10, v{vTmp}")
    A(f"v_lshl_add_u32 v{vOut}, v{vTmp2}, 4, v{vOut}")
    A("s_lshl_b32 s47, s46, 15")
    A("s_lshl_b32 s40, s42, 7")
    A("s_add_u32 s47, s47, s40")
    A("s_lshl_b32 s40, s45, 6")
    A("s_add_u32 s47, s47, s40")
    A("s_mov_b64 s[24:25], s[18:19]")
    A(f"s_mov_b32 s26, {2048*1024}")
    A(f"s_mul_i32 s49, s46, {HHKS*1024}")
    A("s_lshl_b32 s40, s45, 10")
    A("s_add_u32 s49, s49, s40")
    A(f"s_add_u32 s49, s49, {WS_HH}")
    for r in range(32): A(f"v_mov_b32 v{AC5+r}, 0")
    A("s_mov_b32 s51, 0")
    def rw5(i):
        for cw in range(2):
            for rd in range(2):
                A(f"ds_read_b64_tr_b16 {v(WF5+i*8+cw*4+rd*2,2)}, v{(vW0, vW1)[cw]} offset:{i*4096 + rd*1024}")
    def al5(i):
        A(f"buffer_load_dwordx4 {v(AF5+4*i,4)}, v{vLo}, s[20:23], s49 offen offset:{(i & 1)*2048} sc1")
        if i & 1: A("s_add_u32 s49, s49, 4096")
    A("s_barrier")
    for i in range(10): rw5(i)
    wait_flags(A, 3, "p3", 140)
    A.stamp()
    for i in range(10): al5(i)
    A.raw(".p2align 6")
    A.label(f"{NAME}_c5")
    A(f"v_add_u32 v{vW0}, 40960, v{vW0}")
    A(f"v_add_u32 v{vW1}, 40960, v{vW1}")
    A("s_waitcnt lgkmcnt(0)")
    A("s_cmp_lg_u32 s51, 0")
    A(f"s_cbranch_scc1 {NAME}_c5n")
    A("s_barrier")
    A.label(f"{NAME}_c5n")
    for i in range(10):
        A("s_waitcnt vmcnt(9)")
        for cw in range(2): mm(A, AC5 + 16*cw, WF5 + i*8 + cw*4, AF5 + 4*i, v(AC5 + 16*cw, 16))
        al5(i)
        rw5(i)
    A("s_add_u32 s51, s51, 1")
    A("s_cmp_lt_u32 s51, 3")
    A(f"s_cbranch_scc1 {NAME}_c5")
    A(f"v_add_u32 v{vW0}, {-3*40960 & 0xffffffff:#x}, v{vW0}")
    A(f"v_add_u32 v{vW1}, {-3*40960 & 0xffffffff:#x}, v{vW1}")
    A("s_waitcnt lgkmcnt(0)")
    A("s_barrier")
    for i in range(10):
        A(f"s_waitcnt vmcnt({9 if i <= 4 else 13 - i})")
        for cw in range(2): mm(A, AC5 + 16*cw, WF5 + i*8 + cw*4, AF5 + 4*i, v(AC5 + 16*cw, 16))
        if i < 4:
            al5(i); rw5(i)
    A("s_waitcnt lgkmcnt(0)")
    for i in range(4):
        A(f"s_waitcnt vmcnt({3 - i})")
        for cw in range(2): mm(A, AC5 + 16*cw, WF5 + i*8 + cw*4, AF5 + 4*i, v(AC5 + 16*cw, 16))
    A.stamp()
    exchange(A, "x5", AC5, RED5, 144)
    A("s_nop 1")
    for e in range(2):
        A(f"v_permlane32_swap_b32 v{RES+4*e}, v{RES+4*e+2}")
        A(f"v_permlane32_swap_b32 v{RES+4*e+1}, v{RES+4*e+3}")
    for e in range(2):
        A(f"buffer_store_dwordx4 {v(RES+4*e,4)}, v{vOut}, s[24:27], s47 offen offset:{e*32}")
    A.dump(1, 4, 33)
    A("s_endpgm")

def gen(A):
    kernel_begin(A, NAME)
    A("s_cmp_ge_u32 s2, 256")
    A(f"s_cbranch_scc1 {NAME}_end")
    A.stamp()
    A("s_load_dwordx2 s[20:21], s[0:1], 72")
    A("s_load_dwordx16 s[4:19], s[0:1], 0")
    A(f"v_lshrrev_b32 v{vTmp}, 6, v0")
    A(f"v_and_b32 v{vL}, 63, v0")
    A(f"v_readfirstlane_b32 s32, v{vTmp}")
    A(f"v_lshlrev_b32 v{vLo}, 4, v{vL}")
    A("s_and_b32 s34, s2, 7")
    A("s_lshr_b32 s35, s2, 3")
    A("s_and_b32 s33, s32, 3")
    A("s_lshl_b32 s37, s34, 11")
    A(f"s_add_u32 s37, s37, {WS_FL}")
    A(f"s_mov_b32 s22, {WS_SIZE:#x}")
    A("s_mov_b32 s23, 0x20000")
    slow = attention(A)
    A("s_waitcnt vmcnt(0)")
    A("s_barrier")
    A.stamp()
    n0 = A.nst
    A("s_cmp_lt_u32 s32, 4")
    A(f"s_cbranch_scc1 {NAME}_comp")
    helper(A)
    A.label(f"{NAME}_comp")
    A.nst = n0
    compute(A)
    slow()
    A.label(f"{NAME}_end")
    A("s_endpgm")
    return dict(name=NAME, vgpr=NV, agpr=0, grid=256, block=512, lds=LDS)
```

```python
from asmlib import *
from layout import *

NAME = "qkv_kernel"
SLOT = 28672
NS = 5
CS = NS * SLOT
GR = CS + 2048
GST = 144
LDS = GR + 4 * 32 * GST
BIG = 0x40000000
import os
D = int(os.environ.get('K1D','2'))

def gen(A, prefetch=None):
    kernel_begin(A, NAME)
    vL, vLo, vTmp, vTmp2 = 1, 2, 3, 4
    vXd = [5, 6, 7, 8]
    vWd = 9
    vXb = [10, 11, 12, 13]
    vWb = 14
    vXr = [15, 16, 17, 18]
    vWr = 19
    SEL = 20
    SX = 24
    CSA = 28
    ACC = 40
    GRM = 88
    FR = 104
    NV = 136
    A("s_cmp_ge_u32 s2, 256")
    A(f"s_cbranch_scc1 {NAME}_end")
    A.stamp()
    A("s_load_dwordx4 s[4:7], s[0:1], 0")
    A("s_load_dwordx2 s[8:9], s[0:1], 72")
    A(f"v_lshrrev_b32 v{vTmp}, 6, v0")
    A(f"v_and_b32 v{vL}, 63, v0")
    A(f"v_readfirstlane_b32 s23, v{vTmp}")
    A("s_and_b32 s3, s2, 7")
    A("s_lshr_b32 s10, s2, 3")
    A("s_lshr_b32 s25, s3, 1")
    A("s_lshl_b32 s25, s25, 2")
    A("s_and_b32 s11, s10, 3")
    A("s_add_u32 s25, s25, s11")
    A("s_and_b32 s26, s3, 1")
    A("s_lshl_b32 s26, s26, 3")
    A("s_lshr_b32 s27, s10, 2")
    A("s_add_u32 s26, s26, s27")
    A("s_and_b32 s24, s23, 3")
    A("s_lshl_b32 s28, s25, 2")
    A("s_add_u32 s33, s28, s24")
    A("s_lshl_b32 s34, s24, 12")
    A("s_cmp_lt_u32 s23, 4")
    A(f"s_cbranch_scc1 {NAME}_comp")

    def wbase():
        A(f"v_lshrrev_b32 v{vTmp2}, 5, v{vL}")
        A(f"v_bfe_u32 v{vTmp}, v{vL}, 2, 2")
        A(f"v_lshl_add_u32 v{vTmp}, v{vTmp2}, 3, v{vTmp}")
        A(f"v_lshlrev_b32 v{vWb}, 6, v{vTmp}")
        A(f"v_bfe_u32 v{vTmp}, v{vL}, 4, 1")
        A(f"v_lshl_add_u32 v{vWb}, v{vTmp}, 5, v{vWb}")
        A(f"v_and_b32 v{vTmp}, 3, v{vL}")
        A(f"v_lshl_add_u32 v{vWb}, v{vTmp}, 3, v{vWb}")
        A(f"v_add_u32 v{vWb}, 16384, v{vWb}")
    def sel():
        A(f"v_lshrrev_b32 v{vTmp}, 2, v{vL}")
        A(f"v_xor_b32 v{vTmp}, v{vTmp}, v{vL}")
        A(f"v_bfe_u32 v{vTmp}, v{vTmp}, 2, 1")
        A(f"v_add_u32 v{vTmp}, -1, v{vTmp}")
        for r in range(4):
            A(f"v_and_b32 v{SEL+r}, 0x3f803f80, v{vTmp}")

    if os.environ.get("HPRIO"): A(f"s_setprio {os.environ['HPRIO']}")
    A("s_lshl_b32 s11, s11, 1")
    A("s_add_u32 s27, s27, s11")
    A("s_lshl_b32 s28, s33, 15")
    A("s_mul_i32 s29, s26, 192")
    A(f"s_mul_i32 s11, s24, {16*3072}")
    A("s_add_u32 s29, s29, s11")
    A("s_lshl_b32 s35, s24, 10")
    A("s_add_u32 s35, s35, 16384")
    A(f"v_lshrrev_b32 v{vTmp}, 3, v{vL}")
    A(f"v_lshlrev_b32 v{vXd[0]}, 10, v{vTmp}")
    A(f"v_lshrrev_b32 v{vTmp}, 4, v{vL}")
    A(f"v_and_b32 v{vTmp2}, 7, v{vL}")
    A(f"v_xor_b32 v{vTmp}, v{vTmp}, v{vTmp2}")
    A(f"v_lshl_add_u32 v{vXd[0]}, v{vTmp}, 4, v{vXd[0]}")
    A(f"v_xor_b32 v{vXd[1]}, 0x2040, v{vXd[0]}")
    A(f"v_xor_b32 v{vXd[2]}, 0x4000, v{vXd[0]}")
    A(f"v_xor_b32 v{vXd[3]}, 0x6040, v{vXd[0]}")
    A(f"v_lshrrev_b32 v{vTmp}, 2, v{vL}")
    A(f"v_mul_u32_u24 v{vWd}, 3072, v{vTmp}")
    A(f"v_and_b32 v{vTmp}, 3, v{vL}")
    A(f"v_lshl_add_u32 v{vWd}, v{vTmp}, 4, v{vWd}")
    A("s_mov_b32 s36, 0")
    A("s_mov_b32 s37, 0")
    A(f"s_mov_b32 s14, {2048*1024:#x}")
    A("s_mov_b32 s15, 0x20000")
    A(f"s_mov_b32 s18, {512*3072:#x}")
    A("s_mov_b32 s19, 0x20000")
    A("s_waitcnt lgkmcnt(0)")
    A("s_mov_b64 s[12:13], s[4:5]")
    A("s_mov_b64 s[16:17], s[6:7]")
    def issue(fill=()):
        fill = list(fill)
        per = (len(fill) + 5) // 6
        def f():
            n = 0
            for _ in range(per):
                if fill:
                    A(fill.pop(0)); n += 1
            if n == 0: A("s_nop 0")
        for op in ["s_add_u32 s30, s27, s36", "s_and_b32 s30, s30, 7", "s_lshl_b32 s31, s30, 7", "s_add_u32 s31, s31, s28",
                   f"s_mul_i32 s30, s30, {64*3072}", "s_add_u32 s30, s30, s29",
                   "s_add_u32 m0, s37, s35",
                   "s_cmp_lt_u32 s36, 8", f"s_cselect_b32 s30, s30, {BIG:#x}", f"s_cselect_b32 s31, s31, {BIG:#x}",
                   "s_add_u32 s38, s37, s34", "s_add_u32 s36, s36, 1",
                   f"s_add_u32 s37, s37, {SLOT}", f"s_cmp_eq_u32 s37, {NS*SLOT}", "s_cselect_b32 s37, 0, s37"]:
            A(op)
        for blk in range(3):
            A(f"buffer_load_dwordx4 v{vWd}, s[16:19], s30 offen offset:{blk*64} lds")
            A(f"s_add_u32 m0, m0, {4096-64}" if blk < 2 else "s_mov_b32 m0, s38")
            if blk == 0 and fill: A("s_waitcnt lgkmcnt(0)")
            f()
        for e in range(4):
            A(f"buffer_load_dwordx4 v{vXd[e]}, s[12:15], s31 offen lds")
            if e < 3:
                A("s_add_u32 m0, m0, 1024")
                f()
        assert not fill
    A.label(f"{NAME}_pro")
    issue()
    A(f"s_cmp_lt_u32 s36, {D}")
    A(f"s_cbranch_scc1 {NAME}_pro")
    npf = 0
    wbase()
    A("s_lshl_b32 s11, s24, 10")
    A(f"v_add_u32 v{vWb}, s11, v{vWb}")
    for r in range(12):
        A(f"v_mov_b32 v{CSA+r}, 0")
    A("s_mov_b32 s40, 0")
    A("s_mov_b32 s41, 0")
    A.stamp()
    A(f"s_waitcnt vmcnt({7*(D-1)})")
    A.label(f"{NAME}_hloop")
    A("s_barrier")
    A(f"v_add_u32 v{vWr}, s40, v{vWb}")
    A(f"s_add_u32 s40, s40, {SLOT}")
    A(f"s_cmp_eq_u32 s40, {NS*SLOT}")
    A("s_cselect_b32 s40, 0, s40")
    for blk in range(3):
        for rd in range(2):
            A(f"ds_read_b64_tr_b16 {v(FR+blk*4+rd*2,2)}, v{vWr} offset:{blk*4096 + rd*256}")
    ops = []
    for blk in range(3):
        t = FR + 16 + (blk & 1) * 8
        for i in range(4):
            ops.append(f"v_lshlrev_b32 v{t+2*i}, 16, v{FR+4*blk+i}")
            ops.append(f"v_and_b32 v{t+2*i+1}, 0xffff0000, v{FR+4*blk+i}")
        for i in range(8):
            ops.append(f"v_add_f32 v{CSA+4*blk+(i&3)}, v{CSA+4*blk+(i&3)}, v{t+i}")
    issue(ops)
    A("s_add_u32 s41, s41, 1")
    A("s_cmp_lt_u32 s41, 8")
    A(f"s_waitcnt vmcnt({7*(D-1)})")
    A(f"s_cbranch_scc1 {NAME}_hloop")
    A(f"v_and_b32 v{vTmp}, 31, v{vL}")
    A(f"v_lshlrev_b32 v{vTmp}, 2, v{vTmp}")
    A("s_mul_i32 s11, s24, 384")
    A(f"s_add_u32 s11, s11, {CS}")
    A(f"v_add_u32 v{vTmp}, s11, v{vTmp}")
    for blk in range(3):
        c = CSA + 4*blk
        A(f"v_add_f32 v{c}, v{c}, v{c+1}")
        A(f"v_add_f32 v{c+2}, v{c+2}, v{c+3}")
    for blk in range(3):
        c = CSA + 4*blk
        A(f"v_add_f32 v{c}, v{c}, v{c+2}")
    for blk in range(3):
        c = CSA + 4*blk
        A(f"v_mov_b32 v{c+1}, v{c}")
    A("s_nop 1")
    for blk in range(3):
        c = CSA + 4*blk
        A(f"v_permlane32_swap_b32 v{c}, v{c+1}")
    A("s_nop 1")
    for blk in range(3):
        c = CSA + 4*blk
        A(f"v_add_f32 v{c}, v{c}, v{c+1}")
    for blk in range(3):
        A(f"ds_write_b32 v{vTmp}, v{CSA+4*blk} offset:{blk*128}")
    A("s_waitcnt lgkmcnt(0)")
    A("s_barrier")
    A(f"v_and_b32 v{vTmp}, 31, v{vL}")
    A(f"v_lshlrev_b32 v{vTmp}, 2, v{vTmp}")
    A("s_lshl_b32 s11, s24, 7")
    A(f"s_add_u32 s11, s11, {CS}")
    A(f"v_add_u32 v{vTmp}, s11, v{vTmp}")
    for p in range(4):
        A(f"ds_read_b32 v{CSA+p}, v{vTmp} offset:{p*384}")
    A("s_waitcnt lgkmcnt(0)")
    A(f"v_add_f32 v{CSA}, v{CSA}, v{CSA+1}")
    A(f"v_add_f32 v{CSA+2}, v{CSA+2}, v{CSA+3}")
    A(f"v_add_f32 v{CSA}, v{CSA}, v{CSA+2}")
    A(f"ds_write_b32 v{vTmp}, v{CSA} offset:1536")
    A("s_waitcnt lgkmcnt(0)")
    A("s_barrier")
    A("s_endpgm")

    A.label(f"{NAME}_comp")
    A.nst = 2 if A.diag else 0
    if prefetch: prefetch(A, vTmp, vWd, vL, "qkv")
    A(f"v_lshlrev_b32 v{vLo}, 4, v{vL}")
    A(f"v_and_b32 v{vTmp}, 31, v{vL}")
    A(f"v_lshlrev_b32 v{vXb[0]}, 7, v{vTmp}")
    A(f"v_bfe_u32 v{vTmp}, v{vL}, 1, 3")
    A(f"v_lshrrev_b32 v{vTmp2}, 5, v{vL}")
    A(f"v_xor_b32 v{vTmp}, v{vTmp}, v{vTmp2}")
    A(f"v_lshl_add_u32 v{vXb[0]}, v{vTmp}, 4, v{vXb[0]}")
    A(f"v_add_u32 v{vXb[0]}, s34, v{vXb[0]}")
    for k in range(1, 4):
        A(f"v_xor_b32 v{vXb[k]}, {k*32}, v{vXb[0]}")
    wbase()
    for k in range(4):
        A(f"v_mov_b32 v{vXr[k]}, v{vXb[k]}")
    A(f"v_mov_b32 v{vWr}, v{vWb}")
    sel()
    for r in list(range(SX, SX+4)) + list(range(ACC, GRM + 16)):
        A(f"v_mov_b32 v{r}, 0")
    vA1, vA2, vA3 = vXd[0], vXd[1], vXd[2]
    A(f"v_and_b32 v{vTmp}, 31, v{vL}")
    A(f"v_lshrrev_b32 v{vTmp2}, 5, v{vL}")
    A(f"s_mul_i32 s30, s24, {32*GST}")
    A(f"s_add_u32 s30, s30, {GR}")
    A(f"v_mul_u32_u24 v{vA2}, {GST}, v{vTmp}")
    A(f"v_add_u32 v{vA2}, s30, v{vA2}")
    A(f"v_lshl_add_u32 v{vA3}, v{vTmp}, 2, v{vA2}")
    A(f"v_lshl_add_u32 v{vA2}, v{vTmp2}, 4, v{vA2}")
    A(f"v_lshlrev_b32 v{vA1}, 4, v{vTmp2}")
    A(f"v_add_u32 v{vA1}, {CS+1536}, v{vA1}")
    A("s_mul_i32 s34, s26, 6")
    A("s_lshl_b32 s35, s33, 10")
    A("s_lshl_b32 s38, s34, 16")
    A("s_add_u32 s38, s38, s35")
    A(f"s_mov_b32 s36, {f32bits(QSCALE):#x}")
    for blk in range(3):
        A(f"s_add_u32 s37, s34, {2*blk}")
        A("s_cmp_lt_u32 s37, 32")
        A(f"s_cselect_b32 s{42+blk}, s36, 1.0")
    A(f"s_mov_b32 s30, {f32bits(1.0/512):#x}")
    A(f"s_mov_b32 s31, {f32bits(1e-5):#x}")
    A("s_mov_b32 s40, 0")
    A("s_mov_b32 s41, 0")
    A("s_waitcnt lgkmcnt(0)")
    srd(A, 20, 8, WS_SIZE)
    A("s_lshl_b32 s45, s2, 2")
    A("s_add_u32 s45, s45, s24")
    A("s_lshl_b32 s45, s45, 10")
    A(f"s_add_u32 s45, s45, {WS_FL}")
    A("s_cmp_lt_u32 s2, 4")
    A(f"s_cselect_b32 s45, s45, {BIG:#x}")
    A(f"buffer_store_dwordx4 {v(ACC,4)}, v{vLo}, s[20:23], s45 offen")
    if os.environ.get("NOTOUCH1") != "1":
        A(f"v_lshrrev_b32 v{vTmp}, 3, v{vL}")
        A(f"v_min_u32 v{vTmp}, 5, v{vTmp}")
        A(f"v_lshlrev_b32 v{vTmp}, 16, v{vTmp}")
        A(f"v_and_b32 v{vTmp2}, 7, v{vL}")
        A(f"v_lshl_add_u32 v{vTmp}, v{vTmp2}, 7, v{vTmp}")
    A.stamp()
    A("s_barrier")
    if os.environ.get("NOTOUCH1") != "1":
        A(f"buffer_load_dword v{vWd}, v{vTmp}, s[20:23], s38 offen")
    A.stamp()

    def read_ops(k, buf):
        d = FR + buf*16
        ops = [f"ds_read_b128 {v(d,4)}, v{vXr[k]}"]
        for blk in range(3):
            for rd in range(2):
                ops.append(f"ds_read_b64_tr_b16 {v(d+4+blk*4+rd*2,2)}, v{vWr} offset:{blk*4096 + k*1024 + rd*256}")
        return ops
    def kstep(k, extra=None, reads=True):
        buf = k & 1
        d = FR + buf*16
        x = v(d, 4)
        rd = read_ops((k + 1) & 3, buf ^ 1) if reads else [[]]*0
        mf = [f"v_mfma_f32_32x32x16_bf16 {v(GRM,16)}, {x}, {x}, {v(GRM,16)}",
              f"v_mfma_f32_16x16x32_bf16 {v(SX,4)}, {v(SEL,4)}, {x}, {v(SX,4)}"]
        for blk in range(3):
            mf.append(f"v_mfma_f32_32x32x16_bf16 {v(ACC+16*blk,16)}, {v(d+4+4*blk,4)}, {x}, {v(ACC+16*blk,16)}")
        A("s_waitcnt lgkmcnt(0)")
        fill = [rd[0:3], rd[3:4], rd[4:7], [], []]
        for i in range(5):
            A(mf[i])
            if extra and i in extra:
                for op in extra[i]: A(op)
            for op in fill[i]: A(op)
    for op in read_ops(0, 0): A(op)
    A.raw(".p2align 6")
    A.label(f"{NAME}_loop")
    kstep(0)
    kstep(1)
    kstep(2, {3: [f"s_add_u32 s40, s40, {SLOT}", f"s_cmp_eq_u32 s40, {NS*SLOT}", "s_cselect_b32 s40, 0, s40", "s_add_u32 s41, s41, 1"],
              4: [f"v_add_u32 v{vXr[k]}, s40, v{vXb[k]}" for k in range(4)] + [f"v_add_u32 v{vWr}, s40, v{vWb}", "s_cmp_eq_u32 s41, 8"]})
    A(f"s_cbranch_scc1 {NAME}_epi")
    kstep(3, {0: ["s_barrier"]})
    A(f"s_branch {NAME}_loop")

    A.label(f"{NAME}_epi")
    A.stamp()
    kstep(3, {0: ["s_barrier"]}, reads=False)
    A("s_nop 7")
    for g_ in range(4):
        A(f"ds_write_b128 v{vA2}, {v(GRM+4*g_,4)} offset:{g_*32}")
    vS2 = vXd[3]
    A(f"ds_read_b32 v{vS2}, v{vA3}")
    m, r, t0 = vXb[0], vXb[1], vXb[2]
    A(f"v_mul_f32 v{m}, s30, v{SX}")
    A("s_barrier")
    C0 = GRM
    for blk in range(3):
        for g_ in range(4):
            A(f"ds_read_b128 {v(C0+16*blk+4*g_,4)}, v{vA1} offset:{blk*128 + g_*32}")
    A("s_waitcnt lgkmcnt(12)")
    A(f"v_mul_f32 v{r}, s30, v{vS2}")
    A(f"v_fma_f32 v{r}, -v{m}, v{m}, v{r}")
    A(f"v_max_f32 v{r}, 0, v{r}")
    A(f"v_cvt_pk_bf16_f32 v{t0}, v{m}, v{r}")
    A(f"v_lshlrev_b32 v{m}, 16, v{t0}")
    A(f"v_and_b32 v{r}, 0xffff0000, v{t0}")
    A(f"v_add_f32 v{r}, s31, v{r}")
    A(f"v_cvt_pk_bf16_f32 v{t0}, v{r}, v{r}")
    A(f"v_and_b32 v{r}, 0xffff0000, v{t0}")
    A(f"v_sqrt_f32 v{r}, v{r}")
    A(f"v_sub_f32 v{m}, 0, v{m}")
    A(f"v_cvt_pk_bf16_f32 v{t0}, v{r}, v{r}")
    A(f"v_and_b32 v{r}, 0xffff0000, v{t0}")
    A(f"v_rcp_f32 v{r}, v{r}")
    rs = SEL
    for blk in range(3):
        A(f"s_waitcnt lgkmcnt({8-4*blk})")
        A(f"v_mul_f32 v{rs}, s{42+blk}, v{r}")
        for i in range(0, 16, 2):
            A(f"v_pk_fma_f32 {v(ACC+16*blk+i,2)}, {v(C0+16*blk+i,2)}, {v(m,2)}, {v(ACC+16*blk+i,2)} op_sel_hi:[1,0,1]")
        for i in range(0, 16, 2):
            A(f"v_pk_mul_f32 {v(ACC+16*blk+i,2)}, {v(ACC+16*blk+i,2)}, {v(rs,2)} op_sel_hi:[1,0]")
        for i in range(8):
            A(f"v_cvt_pk_bf16_f32 v{ACC+16*blk+i}, v{ACC+16*blk+2*i}, v{ACC+16*blk+2*i+1}")
        for e in range(2):
            A(f"buffer_store_dwordx4 {v(ACC+16*blk+4*e,4)}, v{vLo}, s[20:23], s38 offen")
            A("s_add_u32 s38, s38, 0x10000")
    A.dump(0, 4, 24)
    A.label(f"{NAME}_end")
    A("s_endpgm")
    return dict(name=NAME, vgpr=NV, agpr=0, grid=256, block=512, lds=LDS, dwaves=4)
```

```python
import sys, os
sys.path.insert(0, os.path.dirname(__file__))
from asmlib import *
os.environ.setdefault('NOTOUCH','1'); os.environ.setdefault('NOTOUCH1','1')
import k1, fz
HEAD = open("sequential_preLN__mha_block__glu_gated_glu__prompt.s.ref").read().split("; Override launch")[0]
def code_prefetch(A, vT, vD, vL, tag):
    A("s_getpc_b64 s[50:51]")
    A.label(f"pc_{tag}")
    A(f"s_sub_u32 s50, s50, pc_{tag}-qkv_kernel")
    A("s_subb_u32 s51, s51, 0")
    A(f"v_lshlrev_b32 v{vT}, 7, v{vL}")
    A(f"global_load_dword v{vD}, v{vT}, s[50:51]")
    A(f"v_add_u32 v{vT}, 8192, v{vT}")
    A(f"v_min_u32 v{vT}, code_end-qkv_kernel-4, v{vT}")
    A(f"global_load_dword v{vD}, v{vT}, s[50:51]")

BIG = 0x40000000
class AttnPF:
    def loads(self, A):
        A("s_load_dwordx2 s[56:57], s[0:1], 16")
        A("s_load_dwordx8 s[44:51], s[0:1], 32")
    def setup(self, A, vT, vL):
        from layout import WS_HH, WS_H, HHKS, WS_SIZE
        A("s_lshr_b32 s58, s2, 3")
        A("s_lshl_b32 s58, s58, 4")
        A("s_add_u32 s58, s58, s24")
        A("s_and_b32 s59, s2, 7")
        A(f"v_lshlrev_b32 v{vT}, 7, v{vL}")
        A("s_mov_b32 s55, 0x20000")
        A("s_mov_b32 s60, s58")
        A("s_mov_b64 s[52:53], s[56:57]")
        A(f"s_mov_b32 s54, {512*1024}")
        A("s_cmp_lt_u32 s60, 64")
        A("s_cbranch_scc1 pf_go")
        A("s_sub_u32 s60, s60, 64")
        A("s_mov_b64 s[52:53], s[44:45]")
        A(f"s_mov_b32 s54, {512*2752}")
        A("s_cmp_lt_u32 s60, 172")
        A("s_cbranch_scc1 pf_go")
        A("s_sub_u32 s60, s60, 172")
        A("s_mov_b64 s[52:53], s[46:47]")
        A.label("pf_go")
        A("s_lshl_b32 s60, s60, 13")
        A("s_mov_b32 s15, 0x20000")
        A("s_mov_b32 s57, 0")
        A("s_mov_b64 s[12:13], s[48:49]")
        A(f"s_mov_b32 s14, {1376*1024}")
        A("s_cmp_lt_u32 s58, 172")
        A("s_cbranch_scc1 pf0_go")
        A("s_sub_u32 s58, s58, 172")
        A("s_mov_b64 s[12:13], s[50:51]")
        A(f"s_mov_b32 s14, {2048*1024}")
        A("s_lshl_b32 s57, s59, 18")
        A("s_cmp_lt_u32 s58, 32")
        A("s_cbranch_scc1 pf0_go")
        A("s_sub_u32 s58, s58, 32")
        A("s_mov_b64 s[12:13], s[8:9]")
        A(f"s_mov_b32 s14, {WS_SIZE}")
        A(f"s_add_u32 s57, s57, {WS_H}")
        A("s_cmp_lt_u32 s58, 32")
        A("s_cbranch_scc1 pf0_go")
        A("s_sub_u32 s58, s58, 32")
        A(f"s_mul_i32 s57, s59, {8*HHKS*1024}")
        A(f"s_add_u32 s57, s57, {WS_HH}")
        A("s_cmp_lt_u32 s58, 88")
        A(f"s_cselect_b32 s57, s57, {BIG:#x}")
        A.label("pf0_go")
        A("s_lshl_b32 s61, s58, 13")
        A("s_add_u32 s61, s61, s57")
    def early(self, A, vT, vD):
        if os.environ.get("NOPF0") != "1":
            A(f"buffer_load_dword v{vD}, v{vT}, s[12:15], s61 offen")
    def late(self, A, vT, vD):
        if os.environ.get("NOPF") != "1":
            A(f"buffer_load_dword v{vD}, v{vT}, s[52:55], s60 offen")

def build(out):
    A = Asm()
    A.diag = os.environ.get('DIAG','0')=='1'
    ks = []
    ks.append(k1.gen(A, code_prefetch))
    ks.append(fz.gen(A))
    A.label('code_end')
    txt = HEAD
    order = os.environ.get("ORDER")
    lk = [ks[int(c)] for c in order] if order else ks
    for k in lk:
        txt += f"; @launch kernel={k['name']} grid=({k['grid']},1,1) block=({k['block']},1,1) lds={k['lds']}\n"
    txt += '.amdgcn_target "amdgcn-amd-amdhsa--gfx950"\n.text\n'
    txt += A.text()
    txt += '.section .rodata,"a"\n'
    for k in ks:
        txt += descriptor(k['name'], k['vgpr'], k['agpr'])
    open(out, "w").write(txt)
if __name__ == "__main__":
    build(sys.argv[1] if len(sys.argv) > 1 else "sequential_preLN__mha_block__glu_gated_glu__prompt.s")
```

```python
import sys
ITER=2000
NWS=(4,8,16)
def kernel(name, bodies, nwaves_per_wg_hint=None, vgpr=128):
    s = f"""
.globl {name}
.p2align 8
.type {name},@function
{name}:
    s_load_dwordx2 s[4:5], s[0:1], 0
    v_lshrrev_b32 v1, 6, v0
    s_nop 1
    v_readfirstlane_b32 s14, v1
"""
    for i in range(2, vgpr):
        s += f"    v_mov_b32 v{i}, 0.5\n"
    s += f"""
    s_waitcnt lgkmcnt(0)
    s_lshr_b32 s15, s14, 2
    s_and_b32 s15, s15, {len(bodies)-1}
    s_barrier
    s_memtime s[8:9]
    s_waitcnt lgkmcnt(0)
    s_mov_b32 s12, {ITER}
"""
    for bi in range(len(bodies)):
        s += f"    s_cmp_eq_u32 s15, {bi}\n    s_cbranch_scc1 {name}_b{bi}\n"
    for bi, body in enumerate(bodies):
        s += f".p2align 6\n{name}_b{bi}:\n{body}\n"
        s += f"""    s_sub_u32 s12, s12, 1
    s_cmp_lg_u32 s12, 0
    s_cbranch_scc1 {name}_b{bi}
    s_branch {name}_end
"""
    s += f"""{name}_end:
    s_memtime s[10:11]
    s_waitcnt lgkmcnt(0)
    s_sub_u32 s10, s10, s8
    s_subb_u32 s11, s11, s9
    s_mul_i32 s16, s2, s17
    v_mov_b32 v2, s10
    v_mov_b32 v3, s11
    v_cmp_eq_u32 vcc, 0, v0
    v_and_b32 v5, 63, v0
    v_cmp_eq_u32 vcc, 0, v5
    s_and_saveexec_b64 s[20:21], vcc
    s_mul_i32 s16, s2, NW
    s_add_u32 s16, s16, s14
    s_lshl_b32 s16, s16, 3
    v_mov_b32 v4, s16
    global_store_dwordx2 v4, v[2:3], s[4:5]
    s_endpgm
"""
    return s
def desc(name, vgpr=128):
    return f"""
.amdhsa_kernel {name}
  .amdhsa_next_free_vgpr {vgpr}
  .amdhsa_next_free_sgpr 32
  .amdhsa_accum_offset {vgpr}
  .amdhsa_group_segment_fixed_size 0
  .amdhsa_kernarg_size 16
  .amdhsa_user_sgpr_count 2
  .amdhsa_user_sgpr_kernarg_segment_ptr 1
  .amdhsa_system_sgpr_workgroup_id_x 1
.end_amdhsa_kernel
"""
def meta(name, vgpr=128):
    return f"""  - .name: {name}
    .symbol: {name}.kd
    .kernarg_segment_size: 16
    .kernarg_segment_align: 8
    .group_segment_fixed_size: 0
    .private_segment_fixed_size: 0
    .wavefront_size: 64
    .sgpr_count: 32
    .vgpr_count: {vgpr}
    .max_flat_workgroup_size: 1024
    .args:
      - {{.name: kernargs, .size: 16, .offset: 0, .value_kind: by_value}}
"""
def build(kernels, out, vgpr=64):
    txt = '.amdgcn_target "amdgcn-amd-amdhsa--gfx950"\n.text\n'
    names=[]
    for name,bodies in kernels.items():
        for nw in NWS:
            n=f"{name}_w{nw}"
            txt += kernel(n,bodies,vgpr=vgpr).replace("NW",str(nw)).replace("    s_mul_i32 s16, s2, s17\n","")
            names.append((n,nw))
    txt += '.section .rodata,"a"\n.p2align 6\n'
    for n,_ in names: txt += ".p2align 6\n"+desc(n,vgpr)
    txt += ".amdgpu_metadata\n---\namdhsa.version: [1, 2]\namdhsa.kernels:\n"
    for n,_ in names: txt += meta(n,vgpr)
    txt += "...\n.end_amdgpu_metadata\n"
    open(out,"w").write(txt)
    return names
def rep(fmt, n, base=8):
    return "\n".join("    "+fmt.format(d=base+i, d2=base+2*i, e2=base+2*i+1) for i in range(n))
if __name__=="__main__":
    K={}
    K["exp16"]=[rep("v_exp_f32 v{d}, v{d}",16)]
    K["fma16"]=[rep("v_fma_f32 v{d}, v{d}, v2, v3",16)]
    K["add16"]=[rep("v_add_f32 v{d}, v{d}, v2",16)]
    K["pkfma16"]=[rep("v_pk_fma_f32 v[{d2}:{e2}], v[{d2}:{e2}], v[2:3], v[4:5]",16)]
    K["pkmul16"]=[rep("v_pk_mul_f32 v[{d2}:{e2}], v[{d2}:{e2}], v[2:3]",16)]
    K["cvt16"]=[rep("v_cvt_pk_bf16_f32 v{d}, v2, v3",16)]
    K["perm16"]=[rep("v_perm_b32 v{d}, v2, v3, v4",16)]
    K["max3_16"]=[rep("v_max3_f32 v{d}, v{d}, v2, v3",16)]
    K["exp_fma_roles"]=[rep("v_exp_f32 v{d}, v{d}",16), rep("v_fma_f32 v{d}, v{d}, v2, v3",16)]
    K["exp_fma32_roles"]=[rep("v_exp_f32 v{d}, v{d}",16), rep("v_fma_f32 v{d}, v{d}, v2, v3",32)]
    K["exp_fma_il"]=["\n".join(f"    v_exp_f32 v{8+i}, v{8+i}\n    v_fma_f32 v{30+i}, v{30+i}, v2, v3" for i in range(16))]
    K["exp_2fma_il"]=["\n".join(f"    v_exp_f32 v{8+i}, v{8+i}\n    v_fma_f32 v{30+i}, v{30+i}, v2, v3\n    v_fma_f32 v{46+i}, v{46+i}, v2, v3" for i in range(16))]
    K["mfma32_4"]=["\n".join(f"    v_mfma_f32_32x32x16_bf16 v[{16+16*(i%2)}:{31+16*(i%2)}], v[4:7], v[8:11], v[{16+16*(i%2)}:{31+16*(i%2)}]" for i in range(4))]
    K["mfma16_4"]=["\n".join(f"    v_mfma_f32_16x16x32_bf16 v[{16+4*(i%4)}:{19+4*(i%4)}], v[4:7], v[8:11], v[{16+4*(i%4)}:{19+4*(i%4)}]" for i in range(4))]
    K["mfma16x16_4"]=["\n".join(f"    v_mfma_f32_16x16x16_bf16 v[{16+4*(i%4)}:{19+4*(i%4)}], v[4:5], v[8:9], v[{16+4*(i%4)}:{19+4*(i%4)}]" for i in range(4))]
    K["mfma32x8_4"]=["\n".join(f"    v_mfma_f32_32x32x8_bf16 v[{16+16*(i%2)}:{31+16*(i%2)}], v[4:5], v[8:9], v[{16+16*(i%2)}:{31+16*(i%2)}]" for i in range(4))]
    names=build(K,"mb1.s")
    print(" ".join(f"{n} 256 {nw*64} 0" for n,nw in names))
```

```python
from gen_mb import desc, meta
NP=8
def kernel(name, grp, st, ld, fst='sc0 sc1', fld='sc0 sc1', fresh=False):
    s=f"""
.globl {name}
.p2align 8
.type {name},@function
{name}:
    s_memrealtime s[20:21]
    s_load_dwordx4 s[4:7], s[0:1], 0
    v_lshrrev_b32 v1, 6, v0
    v_and_b32 v5, 63, v0
    v_readfirstlane_b32 s14, v1
"""
    if grp=='xcd': s+="    s_and_b32 s30, s2, 7\n    s_lshr_b32 s31, s2, 3\n"
    else: s+="    s_lshr_b32 s30, s2, 5\n    s_and_b32 s31, s2, 31\n"
    s+=f"""
    s_waitcnt lgkmcnt(0)
    s_mov_b32 s8, s6
    s_mov_b32 s9, s7
    s_mov_b32 s10, 0x4000000
    s_mov_b32 s11, 0x20000
    s_lshl_b32 s32, s30, 5
    s_add_u32 s32, s32, s31
    v_lshlrev_b32 v2, 4, v0
    v_lshlrev_b32 v6, 4, v5          ; lane*16
    v_lshlrev_b32 v7, 2, v5          ; lane*4
    v_mov_b32 v20, 0
    s_mov_b32 s33, 0                 ; phase
    s_mov_b32 s40, 0
    s_mov_b32 s41, 0
    s_mov_b32 s42, 0
    s_mov_b32 s43, 0
    s_lshl_b32 s34, s30, 7
    s_add_u32 s34, s34, 0x1000000
{name}_loop:
    s_memtime s[50:51]
    s_lshl_b32 s35, s33, 16
    s_lshl_b32 s36, s32, 8
    s_add_u32 s35, s35, s36
    s_add_u32 s35, s35, 1
    v_mov_b32 v8, s35
    v_mov_b32 v9, s35
    v_mov_b32 v10, s35
    v_mov_b32 v11, s35
    {"s_add_u32 s36, s33, 9" if fresh else "s_and_b32 s36, s33, 1"}
    s_lshl_b32 s36, s36, 21          ; ping-pong
    s_lshl_b32 s37, s32, 13
    s_add_u32 s37, s37, s36
    buffer_store_dwordx4 v[8:11], v2, s[8:11], s37 offen {st}
    s_waitcnt vmcnt(0)
    s_barrier
    s_memtime s[52:53]
    s_add_u32 s38, s33, 1
    s_cmp_lg_u32 s14, 0
    s_cbranch_scc1 {name}_wait
    v_mov_b32 v12, s38
    s_lshl_b32 s39, s31, 2
    s_add_u32 s39, s39, s34
    v_mov_b32 v13, 0
    s_mov_b64 exec, 1
    buffer_store_dword v12, v13, s[8:11], s39 offen {fst}
    s_mov_b32 exec_lo, -1
    s_mov_b32 s47, 0
{name}_poll:
    s_add_u32 s47, s47, 1
    s_cmp_gt_u32 s47, 20000
    s_cbranch_scc1 {name}_giveup
    buffer_load_dword v14, v7, s[8:11], s34 offen {fld}
    s_waitcnt vmcnt(0)
    v_cmp_gt_u32 vcc, s38, v14
    s_cbranch_vccnz {name}_poll
{name}_giveup:
    s_mov_b64 exec, -1
{name}_wait:
    s_barrier
    s_memtime s[54:55]
    s_lshl_b32 s39, s14, 2
    s_add_u32 s39, s39, s31
    s_add_u32 s39, s39, 1
    s_and_b32 s39, s39, 31
    s_lshl_b32 s44, s30, 5
    s_add_u32 s39, s39, s44
    s_lshl_b32 s44, s39, 13
    s_add_u32 s44, s44, s36
    s_lshl_b32 s45, s14, 13
"""
    for i in range(8):
        s+=f"    s_add_u32 m0, s45, {i*1024}\n    s_add_u32 s46, s44, {i*1024}\n    buffer_load_dwordx4 v6, s[8:11], s46 offen {ld} lds\n"
    s+=f"""
    s_waitcnt vmcnt(0)
    s_memtime s[56:57]
    s_lshl_b32 s35, s33, 16
    s_lshl_b32 s39, s39, 8
    s_add_u32 s35, s35, s39
    s_add_u32 s35, s35, 1
    v_add_u32 v15, s45, v6
"""
    for i in range(8):
        s+=f"    ds_read_b128 v[24:27], v15 offset:{i*1024}\n    s_waitcnt lgkmcnt(0)\n"
        for r in range(4):
            s+=f"    v_cmp_ne_u32 vcc, s35, v{24+r}\n    s_nop 1\n    v_addc_co_u32 v20, vcc, 0, v20, vcc\n"
    s+=f"""
    s_waitcnt lgkmcnt(0)
    s_cmp_lt_u32 s33, 2
    s_cbranch_scc1 {name}_skip
    s_sub_u32 s46, s52, s50
    s_add_u32 s40, s40, s46
    s_sub_u32 s46, s54, s52
    s_add_u32 s41, s41, s46
    s_sub_u32 s46, s56, s54
    s_add_u32 s42, s42, s46
{name}_skip:
    s_add_u32 s33, s33, 1
    s_cmp_lt_u32 s33, {NP+2}
    s_cbranch_scc1 {name}_loop
    s_memrealtime s[22:23]
    s_waitcnt lgkmcnt(0)
    v_cmp_ne_u32 vcc, 0, v20
    s_nop 1
    s_bcnt1_i32_b64 s43, vcc
    s_lshr_b32 s40, s40, 3
    s_lshr_b32 s41, s41, 3
    s_lshr_b32 s42, s42, 3
    s_mul_i32 s44, s40, 100000
    s_add_u32 s44, s44, s41
    s_mul_i32 s45, s43, 100000
    s_add_u32 s45, s45, s42
    v_mov_b32 v8, s20
    v_mov_b32 v9, s21
    v_mov_b32 v10, s22
    v_mov_b32 v11, s23
    v_mov_b32 v12, s44
    v_mov_b32 v13, 0
    v_mov_b32 v14, s45
    v_mov_b32 v15, 0
    s_mov_b64 exec, 1
    s_mul_i32 s16, s2, 8
    s_add_u32 s16, s16, s14
    s_lshl_b32 s16, s16, 5
    v_mov_b32 v4, s16
    global_store_dwordx4 v4, v[8:11], s[4:5]
    global_store_dwordx4 v4, v[12:15], s[4:5] offset:16
    s_endpgm
"""
    return s
zero="""
.globl zero
.p2align 8
.type zero,@function
zero:
    s_load_dwordx4 s[4:7], s[0:1], 0
    v_lshlrev_b32 v2, 2, v0
    v_add_u32 v2, 0x1000000, v2
    v_mov_b32 v3, 0
    s_waitcnt lgkmcnt(0)
    global_store_dword v2, v3, s[6:7]
    s_endpgm
"""
ks=[("x_fast","xcd","","sc1","","sc1"),("x_fast_fresh","xcd","","sc1","","sc1",True),("x_fast_fresh_nt","xcd","nt","sc1","","sc1",True),("x_fast_fresh_sc0","xcd","sc0","sc1","","sc1",True),("b_sc1_fresh","blk","sc0 sc1","sc1","sc0 sc1","sc1",True)]
txt = '.amdgcn_target "amdgcn-amd-amdhsa--gfx950"\n.text\n'+zero
for k in ks: txt += kernel(*k)
txt += '.section .rodata,"a"\n.p2align 6\n'
names=["zero"]+[k[0] for k in ks]
for n in names: txt += ".p2align 6\n"+desc(n,64).replace("next_free_sgpr 32","next_free_sgpr 64")
txt += ".amdgpu_metadata\n---\namdhsa.version: [1, 2]\namdhsa.kernels:\n"
for n in names: txt += meta(n,64).replace("sgpr_count: 32","sgpr_count: 64")
txt += "...\n.end_amdgpu_metadata\n"
open("sync.s","w").write(txt)
print(" ".join(f"zero 1 256 0 {k[0]} 256 512 65536" for k in ks))
```

```python
import gen_mb
from gen_mb import *
gen_mb.ITER=200
gen_mb.NWS=(4,8)
def mul(b,n): return "\n".join([b]*n)
K={}
pre_lin = "    v_and_b32 v2, 63, v0\n    v_lshlrev_b32 v2, 4, v2\n"
pre_k4 = """    v_and_b32 v1, 63, v0
    v_lshrrev_b32 v3, 2, v1
    v_and_b32 v3, 3, v3
    v_lshrrev_b32 v4, 5, v1
    v_lshl_add_u32 v3, v4, 2, v3
    v_lshlrev_b32 v2, 6, v3
    v_lshrrev_b32 v3, 4, v1
    v_and_b32 v3, 1, v3
    v_lshl_add_u32 v2, v3, 5, v2
    v_and_b32 v3, 3, v1
    v_lshl_add_u32 v2, v3, 3, v2
"""
pre_lin8 = "    v_and_b32 v2, 63, v0\n    v_lshlrev_b32 v2, 3, v2\n"
def rd(op, n, w, step):
    return "\n".join(f"    {op} v[{8+w*(i%12)}:{8+w*(i%12)+w-1}], v2 offset:{i*step}" for i in range(n))
K["b128_48"]=[pre_lin+rd("ds_read_b128",48,4,1024)+"\n    s_waitcnt lgkmcnt(0)"]
K["tr_k4_48"]=[pre_k4+rd("ds_read_b64_tr_b16",48,2,512)+"\n    s_waitcnt lgkmcnt(0)"]
K["tr_lin_48"]=[pre_lin8+rd("ds_read_b64_tr_b16",48,2,512)+"\n    s_waitcnt lgkmcnt(0)"]
K["b64_lin_48"]=[pre_lin8+rd("ds_read_b64",48,2,512)+"\n    s_waitcnt lgkmcnt(0)"]
K["b64_k4_48"]=[pre_k4+rd("ds_read_b64",48,2,512)+"\n    s_waitcnt lgkmcnt(0)"]
def k4step(n, valu):
    t=[]
    for s in range(n):
        for i in range(12): t.append(f"    ds_read_b64_tr_b16 v[{8+2*i+24*(s&1)}:{9+2*i+24*(s&1)}], v2 offset:{(s*12+i)*512}")
        t.append("    s_waitcnt lgkmcnt(12)")
        for b in range(6):
            o=8+24*((s+1)&1)+4*b
            t.append(f"    v_mfma_f32_32x32x16_bf16 a[{16*b}:{16*b+15}], v[{o}:{o+3}], v[56:59], a[{16*b}:{16*b+15}]")
            for q in range(valu): t.append(f"    v_fma_f32 v{60+q}, v{60+q}, v5, v6")
    return "\n".join(t)
K["k4step8_v0"]=[pre_k4+k4step(8,0)]
K["k4step8_v3"]=[pre_k4+k4step(8,3)]
def k4step_il(n, valu):
    t=[]
    for s in range(n):
        t.append("    s_waitcnt lgkmcnt(0)")
        for b in range(6):
            o=8+24*((s+1)&1)+4*b
            t.append(f"    v_mfma_f32_32x32x16_bf16 a[{16*b}:{16*b+15}], v[{o}:{o+3}], v[56:59], a[{16*b}:{16*b+15}]")
            if b<4:
                for i in (3*b,3*b+1,3*b+2): t.append(f"    ds_read_b64_tr_b16 v[{8+2*i+24*(s&1)}:{9+2*i+24*(s&1)}], v2 offset:{(s*12+i)*512}")
            for q in range(valu): t.append(f"    v_fma_f32 v{60+q}, v{60+q}, v5, v6")
    return "\n".join(t)
K["k4il8_v0"]=[pre_k4+k4step_il(8,0)]
K["k4il8_v3"]=[pre_k4+k4step_il(8,3)]
import re
names=build(K,"lds.s",vgpr=64)
t=open("lds.s").read()
t=t.replace(".amdhsa_next_free_vgpr 64",".amdhsa_next_free_vgpr 160").replace(".vgpr_count: 64",".vgpr_count: 160")
open("lds.s","w").write(t)
print(" ".join(f"{n} 256 {nw*64} 65536" for n,nw in names))
```

```python
from gen_mb import desc, meta
from gen_lds import pre_k4
def kernel(name, body, iters):
    s=f"""
.globl {name}
.p2align 8
.type {name},@function
{name}:
    s_load_dwordx4 s[4:7], s[0:1], 0
    v_lshrrev_b32 v1, 6, v0
    s_nop 1
    v_readfirstlane_b32 s14, v1
    v_lshlrev_b32 v7, 4, v0
    s_waitcnt lgkmcnt(0)
"""
    for i in range(16):
        s+=f"    global_load_dwordx4 v[8:11], v7, s[6:7]\n    s_waitcnt vmcnt(0)\n    ds_write_b128 v7, v[8:11]\n    v_add_u32 v7, 4096, v7\n"
    for i in range(32):
        s+=f"    global_load_dwordx4 v[{32+4*i}:{35+4*i}], v7, s[6:7]\n    v_add_u32 v7, 4096, v7\n"
    for r in range(160,256): s+=f"    v_mov_b32 v{r}, 0\n"
    s+=pre_k4
    s+=f"""
    s_waitcnt vmcnt(0) lgkmcnt(0)
    s_barrier
    s_memtime s[8:9]
    s_memrealtime s[20:21]
    s_mov_b32 s12, {iters}
.p2align 6
{name}_l:
{body}
    s_sub_u32 s12, s12, 1
    s_cmp_lg_u32 s12, 0
    s_cbranch_scc1 {name}_l
    s_memtime s[10:11]
    s_memrealtime s[22:23]
    s_waitcnt lgkmcnt(0)
    s_sub_u32 s10, s10, s8
    s_sub_u32 s22, s22, s20
    s_mul_i32 s10, s10, 1
    v_mov_b32 v2, s10
    v_mov_b32 v3, 0
    s_mul_i32 s22, s22, 100000
    s_lshr_b32 s10, s10, 4
    s_add_u32 s22, s22, s10
    v_mov_b32 v2, s22
    s_mov_b64 exec, 1
    s_mul_i32 s16, s2, 4
    s_add_u32 s16, s16, s14
    s_lshl_b32 s16, s16, 3
    v_mov_b32 v4, s16
    global_store_dwordx2 v4, v[2:3], s[4:5]
    s_endpgm
"""
    return s
def b32():
    t=[]
    for ks in range(32):
        for b in range(6):
            if b%2==0: t.append("    s_waitcnt lgkmcnt(8)")
            t.append(f"    v_mfma_f32_32x32x16_bf16 v[{160+16*b}:{175+16*b}], v[{8+4*b}:{11+4*b}], v[{32+4*ks}:{35+4*ks}], v[{160+16*b}:{175+16*b}]")
            for i in range(2): t.append(f"    ds_read_b64_tr_b16 v[{8+4*b+2*i}:{9+4*b+2*i}], v2 offset:{((ks%8)*12+b*2+i)*512}")
    return "\n".join(t)
def b16():
    t=[]
    for s in range(16):
        for c in range(12):
            b=c%6
            if c%2==0: t.append("    s_waitcnt lgkmcnt(8)")
            for tt in range(2):
                a=160+(c*2+tt)*4
                t.append(f"    v_mfma_f32_16x16x32_bf16 v[{a}:{a+3}], v[{8+4*b}:{11+4*b}], v[{32+8*s+4*tt}:{35+8*s+4*tt}], v[{a}:{a+3}]")
            for i in range(2): t.append(f"    ds_read_b64_tr_b16 v[{8+4*b+2*i}:{9+4*b+2*i}], v2 offset:{((s%4)*24+c*2+i)*512}")
    return "\n".join(t)
ks=[("p32_1",b32(),1),("p16_1",b16(),1),("p32_3",b32(),3),("p16_3",b16(),3),("p32_50",b32(),50),("p16_50",b16(),50)]
txt = '.amdgcn_target "amdgcn-amd-amdhsa--gfx950"\n.text\n'
for k in ks: txt += kernel(*k)
txt += '.section .rodata,"a"\n.p2align 6\n'
for k in ks: txt += ".p2align 6\n"+desc(k[0],256)
txt += ".amdgpu_metadata\n---\namdhsa.version: [1, 2]\namdhsa.kernels:\n"
for k in ks: txt += meta(k[0],256)
txt += "...\n.end_amdgpu_metadata\n"
open("pw.s","w").write(txt)
print(" ".join(f"{k[0]} 256 256 65536" for k in ks))
```
